```python
import torch

def _softmax(x, axis=-1):
    return torch.softmax(x, dim=axis)
def _gelu(x):
    return torch.nn.functional.gelu(x, approximate="tanh")
def _silu(x):
    return torch.nn.functional.silu(x)
def _sigmoid(x):
    return torch.sigmoid(x)
def _layernorm(x, axis=-1, eps=1e-5):
    m = x.mean(dim=axis, keepdim=True)
    v = x.var(dim=axis, keepdim=True, unbiased=False)
    return (x - m) / torch.sqrt(v + eps)
def _scatter_add(tgt, idx, src, axis=0):
    return tgt.clone().index_add_(axis, idx, src)
def _segment_sum(src, seg, n):
    out = torch.zeros((n,) + src.shape[1:], dtype=src.dtype)
    return out.index_add_(0, seg, src)
def _pad(x, pw):
    flat = tuple(v for pair in reversed(pw) for v in pair)
    return torch.nn.functional.pad(x, flat)

kernel_name = 'parallel_sum__linear_kernel_hedgehog__glu_gated_reglu__prompt'

def setup_inputs():

    _w = (lambda a: (lambda t: t.to(torch.bfloat16) if t.is_floating_point() else t)(torch.as_tensor(a)))
    def _A_setup():
        B, S, D, H = 1, 2048, 512, 32
        Dh = D // H
        return {
            "x": _w((lambda *s: torch.randn(*s, dtype=torch.bfloat16) * 0.05)(B, S, D)),
            "wqkv": _w((lambda *s: torch.randn(*s, dtype=torch.bfloat16) * 0.2)(D, 3 * D)),
            "w_phi": _w((lambda *s: torch.randn(*s, dtype=torch.bfloat16) * 0.2)(H, Dh, Dh) * (Dh ** -0.5)),
            "wo": _w((lambda *s: torch.randn(*s, dtype=torch.bfloat16) * 0.05)(D, D)),
        }
    _A_in = _A_setup()

    def _B_setup():
        B, S, D, F = 1, 2048, 512, 1376
        return {
            "x": _w((lambda *s: torch.randn(*s, dtype=torch.bfloat16) * 0.05)(B, S, D)),
            "W_gate": _w((lambda *s: torch.randn(*s, dtype=torch.bfloat16) * 0.4)(D, F) * (2.0 / D) ** 0.5),
            "W_up": _w((lambda *s: torch.randn(*s, dtype=torch.bfloat16) * 0.4)(D, F) * (2.0 / D) ** 0.5),
            "W_down": _w((lambda *s: torch.randn(*s, dtype=torch.bfloat16) * 0.4)(F, D) * (1.0 / F) ** 0.5),
        }
    _B_in = _B_setup()

    return {
        "A_x": _A_in["x"],
        "A_wqkv": _A_in["wqkv"],
        "A_w_phi": _A_in["w_phi"],
        "A_wo": _A_in["wo"],
        "B_x": _B_in["x"],
        "B_W_gate": _B_in["W_gate"],
        "B_W_up": _B_in["W_up"],
        "B_W_down": _B_in["W_down"],
    }

def reference(A_x, A_wqkv, A_w_phi, A_wo, B_x, B_W_gate, B_W_up, B_W_down):
    def _A_ref(x, wqkv, w_phi, wo):
        B, S, D = x.shape
        H = 32; Dh = D // H
        qkv = (lambda x, *d: x.permute(*d))((x @ wqkv).reshape(B, S, 3, H, Dh), 2, 0, 3, 1, 4)
        q, k, v = qkv[0], qkv[1], qkv[2]
        pq = torch.einsum("bhsd,hdf->bhsf", q, w_phi)
        pk = torch.einsum("bhsd,hdf->bhsf", k, w_phi)
        phi_q = torch.concatenate([_softmax(pq, axis=-1), _softmax(-pq, axis=-1)], axis=-1)
        phi_k = torch.concatenate([_softmax(pk, axis=-1), _softmax(-pk, axis=-1)], axis=-1)
        kv = torch.einsum("bhsf,bhsd->bhfd", phi_k, v)
        z  = torch.einsum("bhsf->bhf", phi_k)
        num = torch.einsum("bhqf,bhfd->bhqd", phi_q, kv)
        den = torch.einsum("bhqf,bhf->bhq", phi_q, z)[..., None] + 1e-6
        o = num / den
        return (lambda x, *d: x.permute(*d))(o, 0, 2, 1, 3).reshape(B, S, D) @ wo

    def _B_ref(x, W_gate, W_up, W_down):
        gate = torch.einsum("bsd,df->bsf", x, W_gate)
        up = torch.einsum("bsd,df->bsf", x, W_up)
        gate = gate * (lambda x, dt: x.to(dt))(gate > 0, gate.dtype)
        h = gate * up
        return torch.einsum("bsf,fd->bsd", h, W_down)

    x = A_x
    xn = _layernorm(x, axis=-1)
    return x + _A_ref(xn, A_wqkv, A_w_phi, A_wo) + _B_ref(xn, B_W_gate, B_W_up, B_W_down)
```

```python
import re

REG_RE = re.compile(r'(?<![\w.])([vas])(\d+)(?![\w\[])|(?<![\w.])([vas])\[(\d+):(\d+)\]|(?<![\w.])(vcc|exec|m0|scc)(?![\w])')

def regs_of(tok):
    out = []
    for m in REG_RE.finditer(tok):
        if m.group(1):
            out.append((m.group(1), int(m.group(2))))
        elif m.group(3):
            out += [(m.group(3), i) for i in range(int(m.group(4)), int(m.group(5)) + 1)]
        else:
            n = m.group(6)
            if n == 'vcc': out += [('vcc', 0)]
            elif n == 'exec': out += [('exec', 0)]
            elif n == 'm0': out += [('m0', 0)]
    return out

TRANS = ('v_exp_f32', 'v_log_f32', 'v_rcp_f32', 'v_rsq_f32', 'v_sqrt_f32', 'v_sin_f32', 'v_cos_f32')

class Ins:
    __slots__ = ('text', 'kind', 'dst', 'src', 'tag', 'wait_vm', 'wait_lgkm', 'cond', 'passes', 'srcC', 'op', 'note')
    def __init__(self, text, kind):
        self.text = text; self.kind = kind; self.dst = []; self.src = []; self.tag = None
        self.wait_vm = None; self.wait_lgkm = None; self.cond = False; self.passes = 0; self.srcC = []
        self.op = text.split()[0] if text else ''
        self.note = None

def split_ops(text):
    parts = text.split(None, 1)
    if len(parts) == 1: return parts[0], []
    ops = []; depth = 0; cur = ''
    for ch in parts[1]:
        if ch == '[': depth += 1
        if ch == ']': depth -= 1
        if ch == ',' and depth == 0:
            ops.append(cur.strip()); cur = ''
        else: cur += ch
    ops.append(cur.strip())
    return parts[0], ops

def classify(text):
    op, ops = split_ops(text)
    ins = Ins(text, None)
    R = lambda i: regs_of(ops[i]) if i < len(ops) else []
    allsrc = lambda start: [r for o in ops[start:] for r in regs_of(o)]
    if op.startswith('v_mfma'):
        ins.kind = 'mfma'; ins.dst = R(0); ins.src = R(1) + R(2) + R(3); ins.srcC = R(3)
        ins.passes = 8 if '32x32x16' in op else 4
    elif op.startswith('v_cmp'):
        ins.kind = 'valu'; ins.dst = R(0); ins.src = allsrc(1)
    elif op in ('v_readfirstlane_b32', 'v_readlane_b32'):
        ins.kind = 'valu'; ins.dst = R(0); ins.src = allsrc(1)
    elif op.startswith('v_permlane') and 'swap' in op:
        ins.kind = 'valu'; ins.dst = R(0) + R(1); ins.src = R(0) + R(1)
    elif op.startswith('v_'):
        ins.kind = 'valu'; ins.dst = R(0); ins.src = allsrc(1)
        if op.startswith(('v_fmac', 'v_dot2c', 'v_pk_fmac')): ins.src += R(0)
        if op == 'v_cndmask_b32' and len(ops) == 3: ins.src += [('vcc', 0)]
        if op.startswith(('v_add_co', 'v_sub_co', 'v_addc_co')):
            ins.dst = R(0) + R(1); ins.src = allsrc(2)
    elif op.startswith('ds_read') or op.startswith('ds_bpermute'):
        ins.kind = 'ds'; ins.dst = R(0); ins.src = allsrc(1)
    elif op.startswith('ds_write'):
        ins.kind = 'ds'; ins.src = allsrc(0)
    elif op.startswith(('buffer_load', 'global_load')):
        ins.kind = 'vmem'
        if re.search(r'\blds\b', text) or '_lds_' in op:
            ins.src = allsrc(0) + [('m0', 0)]; ins.note = 'dma'
        else:
            ins.dst = R(0); ins.src = allsrc(1)
    elif op.startswith(('buffer_store', 'global_store')):
        ins.kind = 'vmem'; ins.src = allsrc(0); ins.note = 'store'
        ins.srcC = R(0) if op.startswith('buffer') else R(1)
    elif op.startswith(('buffer_atomic', 'global_atomic')):
        ins.kind = 'vmem'; ins.src = allsrc(0)
    elif op.startswith('s_load') or op.startswith('s_memtime') or op.startswith('s_memrealtime'):
        ins.kind = 'smem'; ins.dst = R(0); ins.src = allsrc(1)
    elif op == 's_waitcnt': ins.kind = 'wait'
    elif op == 's_nop': ins.kind = 'nop'
    elif op == 's_barrier': ins.kind = 'barrier'
    elif op.startswith(('s_cbranch', 's_branch', 's_endpgm', 's_setprio', 's_sleep')): ins.kind = 'branch'
    elif op.startswith('s_cmp') or op.startswith('s_bitcmp'):
        ins.kind = 'salu'; ins.src = allsrc(0)
    elif op.startswith('s_'):
        ins.kind = 'salu'; ins.dst = R(0); ins.src = allsrc(1)
        if 'saveexec' in op: ins.dst += [('exec', 0)]; ins.src += [('exec', 0)]
    else:
        raise ValueError('unknown instruction: ' + text)
    return ins

class Asm:
    def __init__(self):
        self.code = []
        self.uid = 0
    def __call__(self, text, tag=None, cond=False):
        for line in text.strip().split('\n'):
            line = line.split(';')[0].strip()
            if not line: continue
            ins = classify(line)
            ins.tag = tag; ins.cond = cond
            self.code.append(ins)
        return self.code[-1]
    def label(self, name):
        ins = Ins(name + ':', 'label'); self.code.append(ins)
    def raw(self, text):
        ins = Ins(text, 'raw'); self.code.append(ins)
    def comment(self, text):
        ins = Ins('; ' + text, 'comment'); self.code.append(ins)
    def wait(self, vm=None, lgkm=None):
        ins = Ins('s_waitcnt', 'wait'); ins.wait_vm = vm; ins.wait_lgkm = lgkm
        self.code.append(ins)
    def newtag(self, base='t'):
        self.uid += 1
        return f'{base}{self.uid}'

def resolve_waits(code):
    out = []
    vm_list = []; lg_list = []
    for ins in code:
        if ins.kind == 'wait' and ins.text == 's_waitcnt':
            parts = []
            for name, want, lst, mx in (('vmcnt', ins.wait_vm, vm_list, 63), ('lgkmcnt', ins.wait_lgkm, lg_list, 15)):
                if want is None: continue
                if want == 0:
                    n = 0
                else:
                    tags = want if isinstance(want, (list, tuple, set)) else [want]
                    idx = -1
                    for t in tags:
                        pos = [i for i, (tg, c) in enumerate(lst) if tg == t]
                        assert pos, f'wait on unknown tag {t}'
                        idx = max(idx, pos[-1])
                    n = sum(1 for (tg, c) in lst[idx + 1:] if not c)
                parts.append(f'{name}({min(n, mx)})')
            ins.text = 's_waitcnt ' + ' '.join(parts)
            out.append(ins)
            continue
        if ins.kind == 'vmem': vm_list.append((ins.tag, ins.cond))
        elif ins.kind == 'ds': lg_list.append((ins.tag, ins.cond))
        elif ins.kind == 'smem':
            lg_list.append((ins.tag, ins.cond))
        out.append(ins)
    return out

def states(ins):
    if ins.kind in ('label', 'comment', 'raw'): return 0
    if ins.kind == 'nop': return int(ins.text.split()[1], 0) + 1
    return 1

VG = ('v', 'a')
def need_between(p, c):
    n = 0
    pd = set(p.dst); cs = set(c.src); cd = set(c.dst)
    if p.kind == 'valu':
        vd = {r for r in pd if r[0] in VG}
        sd = {r for r in pd if r[0] in ('s', 'vcc')}
        if c.kind == 'mfma' and vd & cs: n = max(n, 2)
        if c.kind == 'valu':
            if c.op.startswith('v_permlane') and vd & cs: n = max(n, 2)
            if c.op in ('v_readfirstlane_b32', 'v_readlane_b32') and vd & cs: n = max(n, 1)
            if p.op in TRANS and vd & cs: n = max(n, 1)
            if sd & cs: n = max(n, 2)
            if p.op.startswith('v_permlane') and vd & cs: n = max(n, 1)
        if c.kind == 'vmem' and sd & cs: n = max(n, 5)
        if c.kind == 'salu' and sd & cs: n = max(n, 2)
        if c.kind == 'branch' and 'vcc' in c.op and ('vcc', 0) in sd: n = max(n, 2)
    if p.kind == 'mfma':
        big = 12 if p.passes == 8 else 8
        if c.kind in ('valu', 'ds', 'vmem') and (pd & cs or pd & cd): n = max(n, big)
        if c.kind == 'mfma':
            ab = cs - set(c.srcC)
            if pd & ab: n = max(n, big)
            if pd & set(c.srcC):
                if not (p.dst == c.srcC and p.passes == c.passes): n = max(n, 10 if p.passes == 8 else 6)
            elif pd & cd: n = max(n, big)
        if c.kind == 'valu' and set(p.srcC) & cd: n = max(n, 7 if p.passes == 8 else 3)
    if p.kind == 'salu' and ('m0', 0) in pd and c.kind == 'vmem' and c.note == 'dma': n = max(n, 1)
    if p.kind == 'vmem' and p.note == 'store' and ('x4' in p.op or 'x3' in p.op):
        if set(p.srcC) & cd: n = max(n, 2 if c.kind == 'valu' else 1)
    return n

def pad_hazards(code, window=24):
    out = []
    npad = 0
    for ins in code:
        if ins.kind in ('label', 'comment', 'raw'):
            out.append(ins); continue
        need = 0; dist = 0
        for p in reversed(out):
            if dist >= window: break
            if p.kind in ('comment', 'raw'): continue
            if p.kind == 'label': continue
            r = need_between(p, ins)
            if r > dist: need = max(need, r - dist)
            dist += states(p)
        while need > 0:
            k = min(need, 16)
            nop = Ins(f's_nop {k-1}', 'nop'); out.append(nop); need -= k; npad += k
        out.append(ins)
    return out, npad

def render(code):
    lines = []
    for ins in code:
        if ins.kind == 'label': lines.append(ins.text)
        else: lines.append('    ' + ins.text)
    return '\n'.join(lines) + '\n'
```

```python
import sys
from asmlib import *

KNAME = "parallel_sum__linear_kernel_hedgehog__glu_gated_reglu__prompt_kernel"
A = Asm()
def vr(b, n=1): return f"v{b}" if n == 1 else f"v[{b}:{b+n-1}]"
def ar(b, n=1): return f"a{b}" if n == 1 else f"a[{b}:{b+n-1}]"
def sr(b, n=1): return f"s{b}" if n == 1 else f"s[{b}:{b+n-1}]"

WS_EPOCH = 0
WS_FKV = 4096
WS_FHO = 8192
WS_KVP = 0x10000
WS_HB = 0x200000
WS_SIZE = 0x1000000
L_K, L_V, L_Q = 0, 32768, 65536
SLOT = 12352
def slot_base(u):
    j = u % 10
    return 98304 + SLOT * j if j < 5 else 32768 + SLOT * (j - 5)
L_PHI = 160064
L_PHIK = 0
L_VEXT = 16384
L_KVF = 0
L_ONES = 4096
L_RED = 0
SRD_X, SRD_QKV, SRD_PHI, SRD_WO, SRD_G, SRD_U, SRD_D, SRD_OUT, SRD_WS, SRD_GU = 8, 12, 16, 20, 24, 28, 32, 36, 40, 44
S_PTR = 48
S_OUTP = 64; S_WSP = 68
S_W, S_RB, S_CG, S_TAG = 70, 71, 72, 73
S_T0, S_T1, S_T2, S_T3 = 74, 75, 76, 77
S_X0, S_X1 = 78, 79
S_DA, S_MA = 80, 81
S_DB, S_MB = 82, 83
S_SOFF = 84
S_NOWN = 85
S_HOFF = 86
S_RB64, S_CB = 87, 88
S_W2D, S_W2O, S_M2 = 89, 90, 91
S_HA, S_HBB = 92, 93
S_CNT = 94
S_EXEC = 96
V_LANE, V_L16, V_TRA, V_TRA2, V_TRP, V_TRB, V_TRBC = 1, 2, 3, 4, 5, 6, 7
V_DA, V_DB0 = 8, 9
V_MEAN, V_RSTD, V_SC, V_R2 = 12, 13, 14, 15
V_T = 16
ACC = 32
X = 128
A_W = 0
A_PHI1, A_PHI2 = 48, 52
A_ID = 56
A_EP, A_EM = 60, 68
A_D = 80

def srd(base, ptr_lo, size):
    A(f"s_mov_b32 s{base}, s{ptr_lo}")
    A(f"s_and_b32 s{base+1}, s{ptr_lo+1}, 0xffff")
    A(f"s_mov_b32 s{base+2}, {size}")
    A(f"s_mov_b32 s{base+3}, 0x20000")

def startup():
    A("s_cmp_ge_u32 s2, 256")
    A("s_cbranch_scc1 L_end")
    A(f"s_load_dwordx16 s[{S_PTR}:{S_PTR+15}], s[0:1], 0")
    A(f"s_load_dwordx2 s[{S_OUTP}:{S_OUTP+1}], s[0:1], 64")
    A(f"s_load_dwordx2 s[{S_WSP}:{S_WSP+1}], s[0:1], 80")
    A(f"v_and_b32 v{V_LANE}, 63, v0")
    A(f"v_lshrrev_b32 v{V_T}, 6, v0")
    A(f"v_lshlrev_b32 v{V_L16}, 4, v{V_LANE}")
    A(f"v_readfirstlane_b32 s{S_W}, v{V_T}")
    A(f"s_and_b32 s{S_T0}, s2, 7")
    A(f"s_lshr_b32 s{S_T1}, s2, 3")
    A(f"s_and_b32 s{S_T2}, s{S_T0}, 1")
    A(f"s_lshl_b32 s{S_T2}, s{S_T2}, 3")
    A(f"s_and_b32 s{S_T3}, s{S_T1}, 7")
    A(f"s_add_u32 s{S_RB}, s{S_T2}, s{S_T3}")
    A(f"s_lshr_b32 s{S_T2}, s{S_T0}, 1")
    A(f"s_lshl_b32 s{S_T2}, s{S_T2}, 2")
    A(f"s_lshr_b32 s{S_T3}, s{S_T1}, 3")
    A(f"s_add_u32 s{S_CG}, s{S_T2}, s{S_T3}")
    A(f"s_lshl_b32 s{S_RB64}, s{S_T0}, 2")
    A(f"s_and_b32 s{S_T3}, s{S_T1}, 3")
    A(f"s_add_u32 s{S_RB64}, s{S_RB64}, s{S_T3}")
    A(f"s_lshr_b32 s{S_CB}, s{S_T1}, 2")
    t = V_T
    A(f"v_and_b32 v{t}, 15, v{V_LANE}")
    A(f"s_lshl_b32 s{S_T2}, s{S_W}, 5")
    A(f"v_add_u32 v{t}, s{S_T2}, v{t}")
    A(f"v_lshlrev_b32 v{t}, 10, v{t}")
    A(f"v_lshrrev_b32 v{t+1}, 4, v{V_LANE}")
    A(f"v_lshl_add_u32 v{t}, v{t+1}, 4, v{t}")
    A(f"s_lshl_b32 s{S_X0}, s{S_RB}, 17")
    A(f"s_add_u32 s{S_X1}, s{S_X0}, 16384")
    A.wait(lgkm=0)
    srd(SRD_X, S_PTR + 0, 2048 * 1024)
    xt = []
    for jj in range(16):
        for h in range(2):
            tg = f"x{jj}"
            A(f"buffer_load_dwordx4 {vr(X + (2*jj+h)*4, 4)}, v{t}, s[{SRD_X}:{SRD_X+3}], s{S_X0+h} offen offset:{64*jj}", tag=tg)
    srd(SRD_QKV, S_PTR + 2, 512 * 3072)
    srd(SRD_PHI, S_PTR + 4, 32 * 512)
    srd(SRD_WO, S_PTR + 6, 512 * 1024)
    srd(SRD_G, S_PTR + 10, 512 * 2752)
    srd(SRD_U, S_PTR + 12, 512 * 2752)
    srd(SRD_D, S_PTR + 14, 1376 * 1024)
    srd(SRD_OUT, S_OUTP, 2048 * 1024)
    srd(SRD_WS, S_WSP, WS_SIZE)
    A(f"s_load_dword s{S_TAG}, s[{S_WSP}:{S_WSP+1}], {WS_EPOCH}")
    A(f"v_lshrrev_b32 v{t+1}, 2, v{V_LANE}")
    A(f"v_mul_u32_u24 v{t+1}, 3072, v{t+1}")
    A(f"v_and_b32 v{t+2}, 3, v{V_LANE}")
    A(f"v_lshl_add_u32 v{V_DA}, v{t+2}, 4, v{t+1}")
    A(f"s_mul_i32 s{S_DA}, s{S_W}, {16*3072}")
    A(f"s_lshl_b32 s{S_T2}, s{S_CG}, 6")
    A(f"s_add_u32 s{S_DA}, s{S_DA}, s{S_T2}")
    A(f"s_lshl_b32 s{S_MA}, s{S_W}, 10")
    A(f"s_lshl_b32 s{S_T2}, s{S_CG}, 10")
    A(f"s_mov_b32 m0, {L_PHI}")
    A(f"buffer_load_dwordx4 v{V_L16}, s[{SRD_PHI}:{SRD_PHI+3}], s{S_T2} offen lds", tag="phi")
    for i in range(8):
        for (lb, co) in ((L_K, 1024), (L_V, 2048), (L_Q, 0)):
            A(f"s_add_u32 s{S_SOFF}, s{S_DA}, {i*64*3072 + co}")
            A(f"s_add_u32 m0, s{S_MA}, {lb + 4096*i}")
            A(f"buffer_load_dwordx4 v{V_DA}, s[{SRD_QKV}:{SRD_QKV+3}], s{S_SOFF} offen lds", tag=f"A{i}")
    for m in range(3):
        A(f"v_add_u32 v{t+1}, {64*m}, v{V_LANE}")
        A(f"v_mul_u32_u24 v{t+2}, 171, v{t+1}")
        A(f"v_lshrrev_b32 v{t+2}, 11, v{t+2}")
        A(f"v_mul_u32_u24 v{t+3}, 12, v{t+2}")
        A(f"v_sub_u32 v{t+3}, v{t+1}, v{t+3}")
        A(f"v_mul_u32_u24 v{t+2}, 2752, v{t+2}")
        A(f"v_lshl_add_u32 v{V_DB0+m}, v{t+3}, 4, v{t+2}")
    A(f"s_mul_i32 s{S_T2}, s{S_CG}, 43")
    A(f"s_lshr_b32 s{S_T2}, s{S_T2}, 3")
    A(f"s_add_u32 s{S_T3}, s{S_CG}, 1")
    A(f"s_mul_i32 s{S_T3}, s{S_T3}, 43")
    A(f"s_lshr_b32 s{S_T3}, s{S_T3}, 3")
    A(f"s_sub_u32 s{S_NOWN}, s{S_T3}, s{S_T2}")
    A(f"s_lshl_b32 s{S_HOFF}, s{S_RB}, 2")
    A(f"s_add_u32 s{S_HOFF}, s{S_HOFF}, s{S_W}")
    A(f"s_mul_i32 s{S_HOFF}, s{S_HOFF}, 118")
    A(f"s_add_u32 s{S_CNT}, s{S_HOFF}, s{S_T2}")
    A(f"s_lshl_b32 s{S_CNT}, s{S_CNT}, 10")
    A(f"s_add_u32 s{S_CNT}, s{S_CNT}, {WS_HB}")
    A(f"s_mov_b32 s{S_M2}, s{S_CNT}")
    A(f"s_lshl_b32 s{S_DB}, s{S_T2}, 5")
    A(f"s_and_b32 s{S_T3}, s{S_W}, 1")
    A(f"s_mul_i32 s{S_T2}, s{S_T3}, {16*2752}")
    A(f"s_add_u32 s{S_DB}, s{S_DB}, s{S_T2}")
    A(f"s_mul_i32 s{S_MB}, s{S_T3}, 3072")
    A(f"s_lshr_b32 s{S_T3}, s{S_W}, 1")
    A(f"s_mul_i32 s{S_T2}, s{S_T3}, 6176")
    A(f"s_add_u32 s{S_MB}, s{S_MB}, s{S_T2}")
    A(f"s_cmp_eq_u32 s{S_T3}, 0")
    for i in range(2):
        A(f"s_cselect_b32 s{SRD_GU+i}, s{SRD_G+i}, s{SRD_U+i}")
    A(f"s_mov_b32 s{SRD_GU+2}, {512*2752}")
    A(f"s_mov_b32 s{SRD_GU+3}, 0x20000")
    A(f"v_bfe_u32 v{t+1}, v{V_LANE}, 2, 2")
    A(f"v_bfe_u32 v{t+2}, v{V_LANE}, 4, 1")
    A(f"v_and_b32 v{t+3}, 3, v{V_LANE}")
    A(f"v_lshrrev_b32 v{t+4}, 5, v{V_LANE}")
    A(f"v_lshlrev_b32 v{t+5}, 6, v{t+1}")
    A(f"v_lshl_add_u32 v{t+5}, v{t+2}, 5, v{t+5}")
    A(f"v_lshl_add_u32 v{t+5}, v{t+3}, 3, v{t+5}")
    A(f"v_lshl_add_u32 v{V_TRA}, v{t+4}, 10, v{t+5}")
    A(f"v_add_u32 v{V_TRA2}, {L_Q}, v{V_TRA}")
    A(f"v_lshl_add_u32 v{V_TRP}, v{t+4}, 9, v{t+5}")
    A(f"v_mul_u32_u24 v{t+5}, 192, v{t+1}")
    A(f"v_mul_u32_u24 v{t+6}, 6176, v{t+2}")
    A(f"v_add_u32 v{t+5}, v{t+5}, v{t+6}")
    A(f"v_and_b32 v{t+6}, 1, v{t+3}")
    A(f"v_lshlrev_b32 v{t+6}, 1, v{t+6}")
    A(f"v_lshrrev_b32 v{t+7}, 1, v{t+3}")
    A(f"v_or_b32 v{t+6}, v{t+6}, v{t+7}")
    A(f"v_lshl_add_u32 v{t+5}, v{t+6}, 3, v{t+5}")
    A(f"v_mul_u32_u24 v{t+6}, {16*192}, v{t+4}")
    A(f"v_add_u32 v{V_TRB}, v{t+5}, v{t+6}")

def dma_B(u):
    if u >= 16: return
    A(f"s_add_u32 s{S_SOFF}, s{S_DB}, {32*u*2752}")
    for m in range(3):
        A(f"s_add_u32 m0, s{S_MB}, {slot_base(u) + 1024*m}")
        A(f"buffer_load_dwordx4 v{V_DB0+m}, s[{SRD_GU}:{SRD_GU+3}], s{S_SOFF} offen lds", tag=f"B{u}")

def stats():
    t = V_T
    for i in range(8): A(f"v_mov_b32 v{t+2+i}, 0")
    A(f"v_mov_b32 v{t+10}, 0x3f803f80")
    for jj in range(16):
        A.wait(vm=f"x{jj}")
        for p in range(4):
            A(f"v_permlane16_swap_b32 v{X+(2*jj)*4+p}, v{X+(2*jj+1)*4+p}")
        for r in range(8):
            x = X + 2*jj*4 + r
            A(f"v_dot2_f32_bf16 v{t+2+(r&3)}, v{x}, v{t+10}, v{t+2+(r&3)}")
            A(f"v_dot2_f32_bf16 v{t+6+(r&3)}, v{x}, v{x}, v{t+6+(r&3)}")
    A("s_nop 3")
    A(f"v_add_f32 v{t+2}, v{t+2}, v{t+3}")
    A(f"v_add_f32 v{t+4}, v{t+4}, v{t+5}")
    A(f"v_add_f32 v{t+6}, v{t+6}, v{t+7}")
    A(f"v_add_f32 v{t+8}, v{t+8}, v{t+9}")
    A(f"v_add_f32 v{t+2}, v{t+2}, v{t+4}")
    A(f"v_add_f32 v{t+6}, v{t+6}, v{t+8}")
    A(f"v_mov_b32 v{t+3}, v{t+2}")
    A(f"v_mov_b32 v{t+7}, v{t+6}")
    A(f"v_permlane32_swap_b32 v{t+2}, v{t+3}")
    A(f"v_permlane32_swap_b32 v{t+6}, v{t+7}")
    A(f"v_add_f32 v{t+2}, v{t+2}, v{t+3}")
    A(f"v_add_f32 v{t+6}, v{t+6}, v{t+7}")
    A(f"v_mul_f32 v{V_MEAN}, 0x3b000000, v{t+2}")
    A(f"v_mul_f32 v{t+6}, 0x3b000000, v{t+6}")
    A(f"v_fma_f32 v{t+6}, -v{V_MEAN}, v{V_MEAN}, v{t+6}")
    A(f"v_max_f32 v{t+6}, 0, v{t+6}")
    A(f"v_add_f32 v{t+6}, 0x3727c5ac, v{t+6}")
    A(f"v_rsq_f32 v{V_RSTD}, v{t+6}")
    A(f"v_mul_f32 v{V_SC}, 0x3fb8aa3b, v{V_RSTD}")
    A(f"v_mul_f32 v{V_R2}, v{V_RSTD}, v{V_RSTD}")

def center(s):
    t = V_T
    for p in range(4):
        x = X + 4*s + p
        a, b = t + 2*(p & 1), t + 2*(p & 1) + 1
        A(f"v_lshlrev_b32 v{a}, 16, v{x}")
        A(f"v_and_b32 v{b}, 0xffff0000, v{x}")
        A(f"v_sub_f32 v{a}, v{a}, v{V_MEAN}")
        A(f"v_sub_f32 v{b}, v{b}, v{V_MEAN}")
        A(f"v_cvt_pk_bf16_f32 v{x}, v{a}, v{b}")

def setup_frags():
    t = V_T
    A.wait(vm="phi")
    A("s_barrier")
    A(f"v_bfe_u32 v{t+1}, v{V_LANE}, 2, 2")
    A(f"v_bfe_u32 v{t+2}, v{V_LANE}, 4, 1")
    A(f"v_and_b32 v{t+3}, 3, v{V_LANE}")
    A(f"v_lshrrev_b32 v{t+4}, 5, v{V_LANE}")
    A(f"v_lshl_add_u32 v{t+5}, v{t+4}, 2, v{t+1}")
    A(f"v_lshlrev_b32 v{t+5}, 5, v{t+5}")
    A(f"v_and_b32 v{t+6}, 1, v{t+3}")
    A(f"v_lshl_add_u32 v{t+5}, v{t+6}, 9, v{t+5}")
    A(f"v_lshrrev_b32 v{t+6}, 1, v{t+3}")
    A(f"v_lshl_add_u32 v{t+6}, v{t+2}, 1, v{t+6}")
    A(f"v_lshl_add_u32 v{t+5}, v{t+6}, 3, v{t+5}")
    A(f"v_add_u32 v{t+5}, {L_PHI}, v{t+5}")
    A(f"ds_read_b64_tr_b16 {vr(t+8,2)}, v{t+5}", tag="phr")
    A(f"ds_read_b64_tr_b16 {vr(t+10,2)}, v{t+5} offset:256", tag="phr")
    A(f"v_bfe_u32 v{t+1}, v{V_LANE}, 2, 1")
    A(f"v_cmp_eq_u32 vcc, 0, v{t+1}")
    A.wait(lgkm="phr")
    for p in range(4):
        A(f"v_cndmask_b32 v{t+12}, 0, v{t+8+p}, vcc")
        A(f"v_accvgpr_write_b32 a{A_PHI1+p}, v{t+12}")
        A(f"v_cndmask_b32 v{t+13}, v{t+8+p}, 0, vcc")
        A(f"v_accvgpr_write_b32 a{A_PHI2+p}, v{t+13}")
    A(f"v_and_b32 v{t+1}, 31, v{V_LANE}")
    A(f"v_bfe_u32 v{t+2}, v{V_LANE}, 2, 1")
    A(f"v_lshrrev_b32 v{t+3}, 5, v{V_LANE}")
    A(f"v_cmp_eq_u32 vcc, v{t+2}, v{t+3}")
    A(f"v_cmp_gt_u32 s[{S_EXEC}:{S_EXEC+1}], 16, v{t+1}")
    A(f"s_and_b64 vcc, vcc, s[{S_EXEC}:{S_EXEC+1}]")
    A(f"v_and_b32 v{t+2}, 3, v{t+1}")
    A(f"v_lshrrev_b32 v{t+3}, 3, v{t+1}")
    A(f"v_lshl_add_u32 v{t+2}, v{t+3}, 2, v{t+2}")
    A(f"v_and_b32 v{t+3}, 1, v{t+2}")
    A(f"v_lshlrev_b32 v{t+3}, 4, v{t+3}")
    A(f"v_mov_b32 v{t+4}, 0x3f80")
    A(f"v_lshlrev_b32 v{t+4}, v{t+3}, v{t+4}")
    A(f"v_cndmask_b32 v{t+4}, 0, v{t+4}, vcc")
    A(f"v_lshrrev_b32 v{t+2}, 1, v{t+2}")
    for p in range(4):
        A(f"v_cmp_eq_u32 vcc, {p}, v{t+2}")
        A(f"v_cndmask_b32 v{t+5}, 0, v{t+4}, vcc")
        A(f"v_accvgpr_write_b32 a{A_ID+p}, v{t+5}")

def MF(d, a, b, c):
    A(f"v_mfma_f32_32x32x16_bf16 {d}, {a}, {b}, {c}")

def passA():
    def reads(s, buf):
        jj, e = s >> 1, s & 1
        ro = (32*jj + 8*e) * 64
        for ti, (vb, off) in enumerate(((V_TRA, L_K), (V_TRA, L_V), (V_TRA2, 0))):
            f = A_W + buf*24 + ti*4
            yield ti, [f"ds_read_b64_tr_b16 {ar(f,2)}, v{vb} offset:{off+ro}", f"ds_read_b64_tr_b16 {ar(f+2,2)}, v{vb} offset:{off+ro+256}"]
    A.wait(vm="A0"); A("s_barrier")
    for ti, rd in reads(0, 0):
        for r in rd: A(r, tag=f"ra0_{ti}")
    for s in range(32):
        buf = s & 1
        nxt = list(reads(s+1, buf ^ 1)) if s + 1 < 32 else None
        if nxt and (s + 1) % 4 == 0:
            A.wait(vm=f"A{(s+1)//4}"); A("s_barrier")
        for ti in range(3):
            A.wait(lgkm=f"ra{s}_{ti}")
            acc = vr(ACC + 16*ti, 16)
            MF(acc, ar(A_W + buf*24 + ti*4, 4), vr(X + 4*s, 4), acc if s else "0")
            if nxt:
                for r in nxt[ti][1]: A(r, tag=f"ra{s+1}_{ti}")

def minmax(P, t):
    A(f"v_max3_f32 v{t}, v{P}, v{P+1}, v{P+2}")
    A(f"v_min3_f32 v{t+1}, v{P}, v{P+1}, v{P+2}")
    for i in range(3, 15, 2):
        A(f"v_max3_f32 v{t}, v{t}, v{P+i}, v{P+i+1}")
        A(f"v_min3_f32 v{t+1}, v{t+1}, v{P+i}, v{P+i+1}")
    A(f"v_max_f32 v{t}, v{t}, v{P+15}")
    A(f"v_min_f32 v{t+1}, v{t+1}, v{P+15}")

def feature(acc, P, EP, EM):
    t = V_T
    for p in range(8):
        A(f"v_cvt_pk_bf16_f32 v{t+p}, v{acc+2*p}, v{acc+2*p+1}")
    MF(vr(P,16), ar(A_PHI1,4), vr(t,4), "0")
    MF(vr(P,16), ar(A_PHI2,4), vr(t+4,4), vr(P,16))
    minmax(P, t+8)
    A(f"v_mul_f32 v{t+8}, v{V_SC}, v{t+8}")
    A(f"v_mul_f32 v{t+9}, v{V_SC}, v{t+9}")
    for r in range(16):
        A(f"v_fma_f32 v{EP+r}, v{P+r}, v{V_SC}, -v{t+8}")
        A(f"v_fma_f32 v{EM+r}, -v{P+r}, v{V_SC}, v{t+9}")
    for r in range(16):
        A(f"v_exp_f32 v{EP+r}, v{EP+r}")
        A(f"v_exp_f32 v{EM+r}, v{EM+r}")

def kside():
    t = V_T
    K, V = ACC, ACC + 16
    P, EP, EM = 80, 96, 112
    feature(K, P, EP, EM)
    for (E, s) in ((EP, t+10), (EM, t+11)):
        A(f"v_add_f32 v{s}, v{E}, v{E+1}")
        for r in range(2, 16): A(f"v_add_f32 v{s}, v{s}, v{E+r}")
        A(f"v_rcp_f32 v{s}, v{s}")
    for (E, s) in ((EP, t+10), (EM, t+11)):
        for r in range(16): A(f"v_mul_f32 v{E+r}, v{E+r}, v{s}")
    order = [0, 1, 4, 5, 2, 3, 6, 7]
    for si, E in enumerate((EP, EM)):
        for k, m in enumerate(order):
            A(f"v_cvt_pk_bf16_f32 v{P+8*si+k}, v{E+2*m}, v{E+2*m+1}")
    for r in range(16): A(f"v_mul_f32 v{V+r}, v{V+r}, v{V_RSTD}")
    for p in range(8): A(f"v_cvt_pk_bf16_f32 v{EP+p}, v{V+2*p}, v{V+2*p+1}")
    for p in range(4): A(f"v_mov_b32 v{EP+8+p}, 0x3f803f80")
    A(f"v_and_b32 v{t}, 31, v{V_LANE}")
    A(f"s_lshl_b32 s{S_T0}, s{S_W}, 5")
    A(f"v_add_u32 v{t}, s{S_T0}, v{t}")
    A(f"v_lshlrev_b32 v{t}, 6, v{t}")
    A(f"v_lshrrev_b32 v{t+1}, 5, v{V_LANE}")
    A(f"v_lshl_add_u32 v{t+2}, v{t+1}, 13, v{t}")
    A(f"v_lshl_add_u32 v{t+3}, v{t+1}, 4, v{t}")
    A("s_barrier")
    for c in range(4):
        A(f"ds_write_b128 v{t+2}, {vr(P+4*c,4)} offset:{L_PHIK+16*c}", tag="kw")
    A(f"ds_write_b128 v{t+3}, {vr(EP,4)} offset:{L_VEXT}", tag="kw")
    A(f"ds_write_b128 v{t+3}, {vr(EP+4,4)} offset:{L_VEXT+8192}", tag="kw")
    A(f"ds_write_b128 v{t+3}, {vr(EP+8,4)} offset:{L_VEXT+32}", tag="kw")
    A(f"ds_write_b128 v{t+3}, {vr(EP+8,4)} offset:{L_VEXT+8192+32}", tag="kw")
    A.wait(lgkm=0)
    A("s_barrier")
    A(f"s_cmp_ge_u32 s{S_W}, 2")
    A("s_cbranch_scc1 L_kvdone")
    A(f"s_lshl_b32 s{S_T0}, s{S_W}, 13")
    A(f"v_add_u32 v{t}, s{S_T0}, v{V_TRP}")
    D = P
    for s in range(8):
        fa, fb = EP + 8*(s&1), EP + 8*(s&1) + 4
        A(f"ds_read_b64_tr_b16 {vr(fa,2)}, v{t} offset:{L_PHIK+1024*s}", cond=True)
        A(f"ds_read_b64_tr_b16 {vr(fa+2,2)}, v{t} offset:{L_PHIK+1024*s+256}", cond=True)
        A(f"ds_read_b64_tr_b16 {vr(fb,2)}, v{t} offset:{L_VEXT+1024*s}", cond=True)
        A(f"ds_read_b64_tr_b16 {vr(fb+2,2)}, v{t} offset:{L_VEXT+1024*s+256}", cond=True)
        A.wait(lgkm=0)
        MF(vr(D,16), vr(fa,4), vr(fb,4), vr(D,16) if s else "0")
    for p in range(8):
        A(f"v_cvt_pk_bf16_f32 v{EM+p}, v{D+2*p}, v{D+2*p+1}")
    A(f"s_lshl_b32 s{S_T0}, s{S_CG}, 1")
    A(f"s_add_u32 s{S_T0}, s{S_T0}, s{S_W}")
    A(f"s_lshl_b32 s{S_T0}, s{S_T0}, 15")
    A(f"s_lshl_b32 s{S_T1}, s{S_RB}, 10")
    A(f"s_add_u32 s{S_T0}, s{S_T0}, s{S_T1}")
    A(f"s_add_u32 s{S_T0}, s{S_T0}, {WS_KVP}")
    A(f"s_add_u32 s{S_T1}, s{S_T0}, 16384")
    A(f"buffer_store_dwordx4 {vr(EM,4)}, v{V_L16}, s[{SRD_WS}:{SRD_WS+3}], s{S_T0} offen sc1", cond=True)
    A(f"buffer_store_dwordx4 {vr(EM+4,4)}, v{V_L16}, s[{SRD_WS}:{SRD_WS+3}], s{S_T1} offen sc1", cond=True)
    A.wait(vm=0)
    A.label("L_kvdone")
    A("s_barrier")
    flag_store(WS_FKV, S_CG, S_RB, "L_fkv")

def flag_store(base, s_line, s_idx, lbl):
    t = V_T
    A(f"s_cmp_lg_u32 s{S_W}, 0")
    A(f"s_cbranch_scc1 {lbl}")
    A(f"s_lshl_b32 s{S_T0}, s{s_line}, 7")
    A(f"s_lshl_b32 s{S_T1}, s{s_idx}, 2")
    A(f"s_add_u32 s{S_T0}, s{S_T0}, s{S_T1}")
    A(f"s_add_u32 s{S_T0}, s{S_T0}, {base}")
    A(f"v_mov_b32 v{t}, s{S_TAG}")
    A(f"v_mov_b32 v{t+1}, 0")
    A(f"s_mov_b64 exec, 1")
    A(f"buffer_store_dword v{t}, v{t+1}, s[{SRD_WS}:{SRD_WS+3}], s{S_T0} offen sc1", cond=True)
    A(f"s_mov_b64 exec, -1")
    A.label(lbl)

def poll(base, s_line, lbl):
    t = V_T
    A(f"s_cmp_lg_u32 s{S_W}, 0")
    A(f"s_cbranch_scc1 {lbl}_done")
    A(f"s_lshl_b32 s{S_T0}, s{s_line}, 7")
    A(f"s_add_u32 s{S_T0}, s{S_T0}, {base}")
    A(f"v_and_b32 v{t}, 15, v{V_LANE}")
    A(f"v_lshlrev_b32 v{t}, 2, v{t}")
    A(f"s_mov_b32 s{S_CNT}, 0")
    A.label(f"{lbl}_loop")
    A(f"buffer_load_dword v{t+1}, v{t}, s[{SRD_WS}:{SRD_WS+3}], s{S_T0} offen sc1", cond=True)
    A.wait(vm=0)
    A(f"v_cmp_ne_u32 vcc, s{S_TAG}, v{t+1}")
    A(f"s_add_u32 s{S_CNT}, s{S_CNT}, 1")
    A("s_nop 4")
    A(f"s_cmp_eq_u64 vcc, 0")
    A(f"s_cbranch_scc1 {lbl}_done")
    A(f"s_cmp_lt_u32 s{S_CNT}, 200000")
    A(f"s_cbranch_scc1 {lbl}_loop")
    A.label(f"{lbl}_done")
    A("s_barrier")

def qside():
    t = V_T
    Q = ACC + 32
    P, EP, EM = 80, 96, 112
    feature(Q, P, EP, EM)
    for si, E in enumerate((EP, EM)):
        for m in range(8):
            A(f"v_cvt_pk_bf16_f32 v{P+8*si+m}, v{E+2*m}, v{E+2*m+1}")
    for si in range(2):
        for i in range(4):
            A(f"v_permlane32_swap_b32 v{P+8*si+i}, v{P+8*si+i+4}")
    for r in range(16):
        A(f"v_accvgpr_write_b32 a{A_EP+r}, v{P+r}")

def passB():
    NT = 6
    def reads(s, buf):
        jj, e = s >> 1, s & 1
        out = []
        for ti in range(NT):
            f = A_W + buf*24 + ti*4
            off = (8*e) * 192 + ti*32
            out.append([f"ds_read_b64_tr_b16 {ar(f,2)}, v{V_TRBC} offset:{off}", f"ds_read_b64_tr_b16 {ar(f+2,2)}, v{V_TRBC} offset:{off+4*192}"])
        return out
    def unit_start(u):
        A.wait(vm=f"B{u}"); A("s_barrier")
        dma_B(u + 5)
        A(f"v_add_u32 v{V_TRBC}, {slot_base(u)}, v{V_TRB}")
    unit_start(0)
    rd = reads(0, 0)
    for ti in range(NT):
        for r in rd[ti]: A(r, tag=f"rb0_{ti}")
    for s in range(32):
        buf = s & 1
        nxt = reads(s+1, buf ^ 1) if s + 1 < 32 else None
        if nxt and (s + 1) % 2 == 0: unit_start((s+1)//2)
        for ti in range(NT):
            A.wait(lgkm=f"rb{s}_{ti}")
            acc = vr(ACC + 16*ti, 16)
            MF(acc, ar(A_W + buf*24 + ti*4, 4), vr(X + 4*s, 4), acc if s else "0")
            if nxt:
                for r in nxt[ti]: A(r, tag=f"rb{s+1}_{ti}")

def glu():
    t = V_T
    for ti in range(6):
        a = ACC + 16*ti
        for r in range(8):
            A(f"v_max_f32 v{a+r}, 0, v{a+r}")
            A(f"v_mul_f32 v{a+8+r}, v{a+8+r}, v{V_R2}")
        for r in range(8):
            A(f"v_mul_f32 v{a+r}, v{a+r}, v{a+8+r}")
        for p in range(4):
            A(f"v_cvt_pk_bf16_f32 v{a+8+p}, v{a+2*p}, v{a+2*p+1}")
        if ti == 5:
            A(f"s_cmp_lt_u32 s{S_NOWN}, 6")
            A("s_cbranch_scc1 L_skip6")
        A(f"s_add_u32 s{S_T0}, s{S_M2}, {1024*ti}")
        A(f"buffer_store_dwordx4 {vr(a+8,4)}, v{V_L16}, s[{SRD_WS}:{SRD_WS+3}], s{S_T0} offen sc1", cond=(ti == 5), tag="hst")
        if ti == 5: A.label("L_skip6")

def oside():
    t = V_T
    poll(WS_FKV, S_CG, "L_pkv")
    A(f"s_and_b32 s{S_T0}, s{S_W}, 1")
    A(f"s_lshl_b32 s{S_T1}, s{S_CG}, 1")
    A(f"s_add_u32 s{S_T0}, s{S_T0}, s{S_T1}")
    A(f"s_lshl_b32 s{S_T0}, s{S_T0}, 15")
    A(f"s_lshr_b32 s{S_T1}, s{S_W}, 1")
    A(f"s_lshl_b32 s{S_T1}, s{S_T1}, 14")
    A(f"s_add_u32 s{S_T0}, s{S_T0}, s{S_T1}")
    A(f"s_add_u32 s{S_T0}, s{S_T0}, {WS_KVP}")
    G = 32
    for p in range(16):
        A(f"s_add_u32 s{S_T1}, s{S_T0}, {1024*p}")
        A(f"buffer_load_dwordx4 {vr(G+4*p,4)}, v{V_L16}, s[{SRD_WS}:{SRD_WS+3}], s{S_T1} offen sc1", tag=f"kp{p}")
    D = 96
    for p in range(16):
        A.wait(vm=f"kp{p}")
        MF(vr(D,16), ar(A_ID,4), vr(G+4*p,4), vr(D,16) if p else "0")
    for p in range(4):
        A(f"v_cvt_pk_bf16_f32 v{t+p}, v{D+2*p}, v{D+2*p+1}")
    A(f"s_and_b32 s{S_T0}, s{S_W}, 1")
    A(f"s_lshl_b32 s{S_T0}, s{S_T0}, 1")
    A(f"s_lshr_b32 s{S_T1}, s{S_W}, 1")
    A(f"s_add_u32 s{S_T0}, s{S_T0}, s{S_T1}")
    A(f"s_lshl_b32 s{S_T0}, s{S_T0}, 10")
    A(f"v_add_u32 v{t+4}, s{S_T0}, v{V_L16}")
    A(f"ds_write_b128 v{t+4}, {vr(t,4)} offset:{L_KVF}")
    for p in range(4): A(f"v_mov_b32 v{t+8+p}, 0x3f803f80")
    A(f"v_mov_b32 v{t+5}, {L_ONES}")
    A(f"ds_write_b128 v{t+5}, {vr(t+8,4)}")
    A.wait(lgkm=0)
    A("s_barrier")
    A(f"v_and_b32 v{t}, 27, v{V_LANE}")
    A(f"v_and_b32 v{t}, 31, v{t}")
    A(f"v_cmp_eq_u32 vcc, 17, v{t}")
    for f in range(4):
        A(f"v_add_u32 v{t+1}, {L_KVF + 1024*f}, v{V_L16}")
        A(f"v_mov_b32 v{t+2}, {L_ONES}")
        A(f"v_cndmask_b32 v{t+1}, v{t+1}, v{t+2}, vcc")
        A(f"ds_read_b128 {vr(G+4*f,4)}, v{t+1}", tag="kf")
    A.wait(lgkm="kf")
    for hh in range(2):
        Dp, Dm = 64, 80
        MF(vr(Dp,16), vr(G+8*hh,4), ar(A_EP+4*hh,4), "0")
        MF(vr(Dm,16), vr(G+8*hh+4,4), ar(A_EM+4*hh,4), "0")
        sp, sm = Dp+9, Dm+9
        A(f"v_mul_f32 v{t}, v{Dp+8}, v{sm}")
        A(f"v_fma_f32 v{t}, v{Dm+8}, v{sp}, v{t}")
        A(f"v_mul_f32 v{t+1}, v{sp}, v{sm}")
        A(f"v_mov_b32 v{t+2}, 0x358637bd")
        A(f"v_fma_f32 v{t}, v{t+1}, v{t+2}, v{t}")
        A(f"v_rcp_f32 v{t}, v{t}")
        for r in range(8):
            A(f"v_mul_f32 v{Dp+r}, v{Dp+r}, v{sm}")
            A(f"v_fma_f32 v{Dp+r}, v{Dm+r}, v{sp}, v{Dp+r}")
        for r in range(8):
            A(f"v_mul_f32 v{Dp+r}, v{Dp+r}, v{t}")
        for p in range(4):
            A(f"v_cvt_pk_bf16_f32 v{t+4+4*hh+p}, v{Dp+2*p}, v{Dp+2*p+1}")
        A(f"s_lshl_b32 s{S_T0}, s{S_CG}, 1")
        A(f"s_add_u32 s{S_T0}, s{S_T0}, s{S_HOFF}")
        A(f"s_add_u32 s{S_T0}, s{S_T0}, {86+hh}")
        A(f"s_lshl_b32 s{S_T0}, s{S_T0}, 10")
        A(f"s_add_u32 s{S_T0}, s{S_T0}, {WS_HB}")
        A(f"buffer_store_dwordx4 {vr(t+4+4*hh,4)}, v{V_L16}, s[{SRD_WS}:{SRD_WS+3}], s{S_T0} offen sc1", tag="ost")
    A.wait(vm=0)
    A("s_barrier")
    flag_store(WS_FHO, S_RB, S_CG, "L_fho")

def phase2():
    t = V_T
    NS = 30
    V_DW, V_TR0, V_TR1, V_XO = 8, 9, 10, 11
    ACC2 = 32
    WF = 96
    HF = 128
    XR = 224
    DEPTH = 12
    A(f"v_lshrrev_b32 v{t}, 3, v{V_LANE}")
    A(f"v_lshlrev_b32 v{t}, 10, v{t}")
    A(f"v_and_b32 v{t+1}, 7, v{V_LANE}")
    A(f"v_bfe_u32 v{t+2}, v{V_LANE}, 4, 1")
    A(f"v_lshlrev_b32 v{t+2}, 2, v{t+2}")
    A(f"v_xor_b32 v{t+1}, v{t+1}, v{t+2}")
    A(f"v_lshl_add_u32 v{V_DW}, v{t+1}, 4, v{t}")
    A(f"s_lshl_b32 s{S_W2D}, s{S_W}, 14")
    A(f"s_lshl_b32 s{S_T0}, s{S_CB}, 7")
    A(f"s_add_u32 s{S_W2D}, s{S_W2D}, s{S_T0}")
    A(f"s_mul_i32 s{S_M2}, s{S_W}, 40960")
    def dma(n):
        if n >= NS: return
        isO = n >= 22
        i = n - 22 if isO else n
        sd = SRD_WO if isO else SRD_D
        for hf in range(2):
            A(f"s_add_u32 s{S_SOFF}, s{S_W2D}, {i*65536 + hf*8192}")
            A(f"s_add_u32 m0, s{S_M2}, {(n % 20)*2048 + hf*1024}")
            A(f"buffer_load_dwordx4 v{V_DW}, s[{sd}:{sd+3}], s{S_SOFF} offen lds", tag=f"w{n}")
    for n in range(20): dma(n)
    A(f"v_lshrrev_b32 v{t}, 2, v0")
    A(f"s_lshl_b32 s{S_T0}, s{S_RB64}, 6")
    A(f"v_add_u32 v{t}, s{S_T0}, v{t}")
    A(f"v_lshlrev_b32 v{t}, 10, v{t}")
    A(f"v_and_b32 v{t+1}, 3, v0")
    A(f"v_lshl_add_u32 v{t}, v{t+1}, 5, v{t}")
    A(f"s_lshl_b32 s{S_T0}, s{S_CB}, 7")
    A(f"v_add_u32 v{V_XO}, s{S_T0}, v{t}")
    A(f"buffer_load_dwordx4 {vr(XR,4)}, v{V_XO}, s[{SRD_X}:{SRD_X+3}], 0 offen", tag="xr")
    A(f"buffer_load_dwordx4 {vr(XR+4,4)}, v{V_XO}, s[{SRD_X}:{SRD_X+3}], 0 offen offset:16", tag="xr")
    A(f"v_bfe_u32 v{t+1}, v{V_LANE}, 2, 2")
    A(f"v_lshrrev_b32 v{t+2}, 5, v{V_LANE}")
    A(f"v_lshl_add_u32 v{t+1}, v{t+2}, 3, v{t+1}")
    A(f"v_lshlrev_b32 v{t+1}, 7, v{t+1}")
    A(f"v_bfe_u32 v{t+2}, v{V_LANE}, 4, 1")
    A(f"v_lshl_add_u32 v{t+1}, v{t+2}, 5, v{t+1}")
    A(f"v_and_b32 v{t+2}, 3, v{V_LANE}")
    A(f"v_lshl_add_u32 v{t+1}, v{t+2}, 3, v{t+1}")
    A(f"v_bfe_u32 v{t+2}, v{V_LANE}, 3, 1")
    A(f"v_lshl_add_u32 v{t+1}, v{t+2}, 6, v{t+1}")
    A(f"v_add_u32 v{V_TR0}, s{S_M2}, v{t+1}")
    A(f"v_xor_b32 v{V_TR1}, 64, v{V_TR0}")
    A(f"s_lshl_b32 s{S_HA}, s{S_RB64}, 1")
    A(f"s_mul_i32 s{S_HA}, s{S_HA}, 118")
    A(f"s_add_u32 s{S_HA}, s{S_HA}, s{S_W}")
    A(f"s_lshl_b32 s{S_HA}, s{S_HA}, 10")
    A(f"s_add_u32 s{S_HA}, s{S_HA}, {WS_HB}")
    A(f"s_add_u32 s{S_HBB}, s{S_HA}, {118*1024}")
    A(f"s_lshr_b32 s{S_T3}, s{S_RB64}, 1")
    poll(WS_FHO, S_T3, "L_pho")
    def hload(n):
        if n >= NS: return
        kap = 4*n if n < 22 else 86 + 4*(n-22)
        for tg in range(2):
            A(f"s_add_u32 s{S_SOFF}, s{S_HA+tg}, {kap*1024}")
            A(f"buffer_load_dwordx4 {vr(HF + (n % DEPTH)*8 + tg*4, 4)}, v{V_L16}, s[{SRD_WS}:{SRD_WS+3}], s{S_SOFF} offen sc1", tag=f"h{n}")
    for n in range(DEPTH): hload(n)
    def reads(n):
        b = WF + (n & 1)*8
        o = (n % 20)*2048
        for ct in range(2):
            vb = V_TR0 if ct == 0 else V_TR1
            A(f"ds_read_b64_tr_b16 {vr(b+4*ct,2)}, v{vb} offset:{o}", tag=f"r2_{n}")
            A(f"ds_read_b64_tr_b16 {vr(b+4*ct+2,2)}, v{vb} offset:{o+512}", tag=f"r2_{n}")
    A.wait(vm="w0")
    reads(0)
    for n in range(NS):
        if n + 1 < NS:
            A.wait(vm=f"w{n+1}")
            reads(n + 1)
        A.wait(vm=f"h{n}", lgkm=f"r2_{n}")
        for ct in range(2):
            for tg in range(2):
                acc = vr(ACC2 + (ct*2+tg)*16, 16)
                MF(acc, vr(WF + (n&1)*8 + 4*ct, 4), vr(HF + (n % DEPTH)*8 + tg*4, 4), acc if n else "0")
        hload(n + DEPTH)
        dma(n + 20)
    A("s_barrier")
    A(f"v_and_b32 v{t}, 31, v{V_LANE}")
    A(f"v_mul_u32_u24 v{t}, 272, v{t}")
    A(f"v_lshrrev_b32 v{t+1}, 5, v{V_LANE}")
    A(f"v_lshl_add_u32 v{t}, v{t+1}, 4, v{t}")
    A(f"s_mul_i32 s{S_T0}, s{S_W}, {64*272}")
    A(f"v_add_u32 v{t}, s{S_T0}, v{t}")
    for ct in range(2):
        for tg in range(2):
            for q in range(4):
                a = ACC2 + (ct*2+tg)*16 + 4*q
                A(f"ds_write_b128 v{t}, {vr(a,4)} offset:{L_RED + tg*32*272 + ct*128 + q*32}")
    A.wait(lgkm=0)
    A("s_barrier")
    A(f"v_lshrrev_b32 v{t}, 2, v0")
    A(f"v_mul_u32_u24 v{t}, 272, v{t}")
    A(f"v_and_b32 v{t+1}, 3, v0")
    A(f"v_lshl_add_u32 v{t}, v{t+1}, 6, v{t}")
    R = 96
    for w in range(4):
        if w == 3: A(f"v_add_u32 v{t}, {3*64*272}, v{t}")
        for q in range(4):
            off = (w*64*272 if w < 3 else 0) + 16*q
            A(f"ds_read_b128 {vr(R+16*w+4*q,4)}, v{t} offset:{L_RED+off}", tag=f"rr{w}")
    A.wait(vm="xr", lgkm="rr1")
    for r in range(16): A(f"v_add_f32 v{R+r}, v{R+r}, v{R+16+r}")
    A.wait(lgkm="rr3")
    for r in range(16): A(f"v_add_f32 v{R+32+r}, v{R+32+r}, v{R+48+r}")
    for r in range(16): A(f"v_add_f32 v{R+r}, v{R+r}, v{R+32+r}")
    for p in range(8):
        A(f"v_lshlrev_b32 v{t+2}, 16, v{XR+p}")
        A(f"v_and_b32 v{t+3}, 0xffff0000, v{XR+p}")
        A(f"v_add_f32 v{R+2*p}, v{R+2*p}, v{t+2}")
        A(f"v_add_f32 v{R+2*p+1}, v{R+2*p+1}, v{t+3}")
        A(f"v_cvt_pk_bf16_f32 v{R+16+p}, v{R+2*p}, v{R+2*p+1}")
    A(f"buffer_store_dwordx4 {vr(R+16,4)}, v{V_XO}, s[{SRD_OUT}:{SRD_OUT+3}], 0 offen")
    A(f"buffer_store_dwordx4 {vr(R+20,4)}, v{V_XO}, s[{SRD_OUT}:{SRD_OUT+3}], 0 offen offset:16")
    A(f"s_cmp_lg_u32 s2, 0")
    A("s_cbranch_scc1 L_end")
    A(f"s_cmp_lg_u32 s{S_W}, 0")
    A("s_cbranch_scc1 L_end")
    A(f"v_mov_b32 v{t}, s{S_TAG}")
    A(f"v_mov_b32 v{t+1}, 0")
    A("s_mov_b64 exec, 1")
    A(f"buffer_store_dword v{t}, v{t+1}, s[{SRD_WS}:{SRD_WS+3}], 0 offen sc1", cond=True)

def build():
    startup()
    stats()
    A.wait(lgkm=0)
    A(f"s_add_u32 s{S_TAG}, s{S_TAG}, 1")
    for u in range(5): dma_B(u)
    for s in range(32): center(s)
    setup_frags()
    passA()
    kside()
    qside()
    passB()
    glu()
    oside()
    phase2()
    A.label("L_end")
    A("s_endpgm")

build()
code = resolve_waits(A.code)
code, npad = pad_hazards(code)
hdr = open("cdna_kernels/" + KNAME[:-7] + ".s.ref").read().split("; Override launch")[0]
txt = hdr + "; @launch grid=(256,1,1) block=(256,1,1) lds=163840\n"
txt += f""".amdgcn_target "amdgcn-amd-amdhsa--gfx950"
.text
.globl {KNAME}
.p2align 8
.type {KNAME},@function
{KNAME}:
""" + render(code) + f""".section .rodata,"a"
.p2align 6
.amdhsa_kernel {KNAME}
  .amdhsa_next_free_vgpr 512
  .amdhsa_next_free_sgpr 102
  .amdhsa_accum_offset 256
  .amdhsa_group_segment_fixed_size 0
  .amdhsa_kernarg_size 88
  .amdhsa_user_sgpr_count 2
  .amdhsa_user_sgpr_kernarg_segment_ptr 1
  .amdhsa_system_sgpr_workgroup_id_x 1
.end_amdhsa_kernel
"""
out = sys.argv[1] if len(sys.argv) > 1 else "v1.s"
open(out, "w").write(txt)
print("instructions", sum(1 for i in code if i.kind not in ('label','comment')), "nop states", npad)
assert all((n * 171) >> 11 == n // 12 for n in range(192))
```

```python
import sys
from asmlib import *

KNAME = "parallel_sum__linear_kernel_hedgehog__glu_gated_reglu__prompt_kernel"
ARGS = sys.argv[1:]
TS = "--ts" in ARGS
A = Asm()
def vr(b, n=1): return f"v{b}" if n == 1 else f"v[{b}:{b+n-1}]"
def ar(b, n=1): return f"a{b}" if n == 1 else f"a[{b}:{b+n-1}]"

WS_EPOCH = 0; WS_FKV = 4096; WS_FHO = 8192; WS_KVP = 0x10000; WS_HB = 0x200000; WS_SIZE = 0x1000000; WS_TS = 0xC00000
L_K, L_V, L_Q = 0, 32768, 65536
L_XS = 32768
RING = 98304
L_PHIK, L_VEXT = 0, 16384
L_KVF, L_ONES = 90112, 94208
L_RED = 0
def w2slot(n):
    n %= 19
    return (22528, 2048 * n) if n < 11 else (16384, RING + 2048 * (n - 11))
SRD_X, SRD_QKV, SRD_PHI, SRD_WO, SRD_D, SRD_OUT, SRD_WS, SRD_GU = 8, 12, 16, 20, 24, 28, 32, 36
S_PTR = 48; S_OUTP = 64; S_WSP = 66
S_W, S_RB, S_CG, S_TAG = 68, 69, 70, 71
S_T0, S_T1, S_T2, S_T3 = 72, 73, 74, 75
S_U0, S_U1, S_U2 = 76, 77, 78
S_DA, S_MA, S_DB, S_MB, S_SOFF = 79, 80, 81, 82, 83
S_NOWN, S_HOFF, S_HST = 84, 85, 86
S_RB64, S_CB = 87, 88
S_W2G, S_W2L, S_W2U = 89, 90, 91
S_HA = 92
S_CNT = 94
S_SOFF2 = 95
S_EXEC = 96
V_LANE, V_L16, V_TR64, V_TRQ = 1, 2, 3, 4
V_TRB = 5
V_DA, V_DB, V_DW = 11, 12, 13
V_MEAN, V_SC, V_R2, V_RSTD = 14, 15, 16, 17
V_T = 18
V_TS = 31
ACC = 32
QACC = 112
X = 128
A_W = 0
A_PHI1, A_PHI2, A_ID = 48, 52, 56
A_T5 = 60
A_G = 76
A_D = 140
A_DP, A_DM = 156, 172

TS_NAMES = []
class Q:
    def __init__(self): self.groups = []
    def add(self, fn, atomic=False):
        global A
        save = A; A = Asm(); fn(); code = A.code; A = save
        if atomic: self.groups.append(code)
        else: self.groups += [[i] for i in code]
    def pull(self, budget):
        while self.groups and budget > 0:
            g = self.groups.pop(0)
            for i in g:
                A.code.append(i)
                budget -= 2 if (i.op in TRANS or i.kind == 'mfma') else (0 if i.kind in ('label', 'comment') else 1)
    def flush(self): self.pull(10**9)

def ts(name, real=False):
    if not TS: return
    i = len(TS_NAMES); TS_NAMES.append(name)
    A("s_memrealtime s[98:99]" if real else "s_memtime s[98:99]")
    A.wait(lgkm=0)
    A(f"v_writelane_b32 v{V_TS}, s98, {i}")
def ts_store():
    if not TS: return
    A(f"s_lshl_b32 s{S_T0}, s2, 2")
    A(f"s_add_u32 s{S_T0}, s{S_T0}, s{S_W}")
    A(f"s_lshl_b32 s{S_T0}, s{S_T0}, 8")
    A(f"s_add_u32 s{S_T0}, s{S_T0}, {WS_TS}")
    A(f"v_lshlrev_b32 v{V_T}, 2, v{V_LANE}")
    A(f"buffer_store_dword v{V_TS}, v{V_T}, s[{SRD_WS}:{SRD_WS+3}], s{S_T0} offen")

def srd(base, ptr_lo, size):
    A(f"s_mov_b32 s{base}, s{ptr_lo}")
    A(f"s_and_b32 s{base+1}, s{ptr_lo+1}, 0xffff")
    A(f"s_mov_b32 s{base+2}, {size}")
    A(f"s_mov_b32 s{base+3}, 0x20000")
def S4(b): return f"s[{b}:{b+3}]"
def MF(d, a, b, c): A(f"v_mfma_f32_32x32x16_bf16 {d}, {a}, {b}, {c}")

XR = 120
def startup():
    t = V_T
    A("s_cmp_ge_u32 s2, 256")
    A("s_cbranch_scc1 L_end")
    ts("start_real", True); ts("start")
    A(f"s_load_dwordx16 s[{S_PTR}:{S_PTR+15}], s[0:1], 0")
    A(f"s_load_dwordx2 s[{S_OUTP}:{S_OUTP+1}], s[0:1], 64")
    A(f"s_load_dwordx2 s[{S_WSP}:{S_WSP+1}], s[0:1], 80")
    A(f"v_and_b32 v{V_LANE}, 63, v0")
    A(f"v_lshrrev_b32 v{t}, 6, v0")
    A(f"v_lshlrev_b32 v{V_L16}, 4, v{V_LANE}")
    A(f"v_readfirstlane_b32 s{S_W}, v{t}")
    A(f"s_and_b32 s{S_T0}, s2, 7")
    A(f"s_lshr_b32 s{S_T1}, s2, 3")
    A(f"s_and_b32 s{S_T2}, s{S_T0}, 1")
    A(f"s_lshl_b32 s{S_T2}, s{S_T2}, 3")
    A(f"s_and_b32 s{S_T3}, s{S_T1}, 7")
    A(f"s_add_u32 s{S_RB}, s{S_T2}, s{S_T3}")
    A(f"s_lshr_b32 s{S_T2}, s{S_T0}, 1")
    A(f"s_lshl_b32 s{S_T2}, s{S_T2}, 2")
    A(f"s_lshr_b32 s{S_T3}, s{S_T1}, 3")
    A(f"s_add_u32 s{S_CG}, s{S_T2}, s{S_T3}")
    A(f"s_lshl_b32 s{S_RB64}, s{S_T0}, 2")
    A(f"s_and_b32 s{S_T3}, s{S_T1}, 3")
    A(f"s_add_u32 s{S_RB64}, s{S_RB64}, s{S_T3}")
    A(f"s_lshr_b32 s{S_CB}, s{S_T1}, 2")
    A(f"v_lshrrev_b32 v{t}, 3, v{V_LANE}")
    A(f"v_lshrrev_b32 v{t+1}, 4, v{V_LANE}")
    A(f"v_and_b32 v{t+2}, 7, v{V_LANE}")
    A(f"v_xor_b32 v{t+1}, v{t+1}, v{t+2}")
    A(f"v_lshlrev_b32 v{t}, 10, v{t}")
    A(f"v_lshl_add_u32 v{t}, v{t+1}, 4, v{t}")
    A(f"v_xor_b32 v{t+1}, 64, v{t}")
    A(f"s_lshl_b32 s{S_T2}, s{S_RB}, 17")
    A(f"s_lshl_b32 s{S_T3}, s{S_W}, 15")
    A(f"s_add_u32 s{S_T2}, s{S_T2}, s{S_T3}")
    A(f"s_add_u32 s{S_T3}, s{S_T3}, {L_XS}")
    A.wait(lgkm=0)
    srd(SRD_X, S_PTR + 0, 2048 * 1024)
    for cb in range(8):
        for j in range(4):
            A(f"s_add_u32 s{S_SOFF}, s{S_T2}, {j*8192 + cb*128}")
            A(f"s_add_u32 m0, s{S_T3}, {cb*4096 + j*1024}")
            A(f"buffer_load_dwordx4 v{t+(j&1)}, {S4(SRD_X)}, s{S_SOFF} offen lds", tag=f"x{cb}")
    srd(SRD_QKV, S_PTR + 2, 512 * 3072)
    A(f"v_lshrrev_b32 v{t+2}, 2, v{V_LANE}")
    A(f"v_mul_u32_u24 v{t+2}, 3072, v{t+2}")
    A(f"v_and_b32 v{t+3}, 3, v{V_LANE}")
    A(f"v_lshl_add_u32 v{V_DA}, v{t+3}, 4, v{t+2}")
    A(f"s_mul_i32 s{S_DA}, s{S_W}, {16*3072}")
    A(f"s_lshl_b32 s{S_T0}, s{S_CG}, 6")
    A(f"s_add_u32 s{S_DA}, s{S_DA}, s{S_T0}")
    A(f"s_lshl_b32 s{S_MA}, s{S_W}, 10")
    dma_A(L_K, 1024, "K")
    A(f"v_and_b32 v{t+2}, 31, v{V_LANE}")
    A(f"v_bfe_u32 v{t+3}, v{V_LANE}, 1, 3")
    A(f"v_lshrrev_b32 v{t+4}, 5, v{V_LANE}")
    A(f"v_xor_b32 v{t+3}, v{t+3}, v{t+4}")
    A(f"v_lshlrev_b32 v{t+2}, 7, v{t+2}")
    A(f"v_lshl_add_u32 v{t+2}, v{t+3}, 4, v{t+2}")
    A(f"v_add_u32 v{XR}, s{S_T3}, v{t+2}")
    for e in range(1, 4): A(f"v_xor_b32 v{XR+e}, {32*e}, v{XR}")
    srd(SRD_PHI, S_PTR + 4, 32 * 512)
    srd(SRD_WO, S_PTR + 6, 512 * 1024)
    srd(SRD_D, S_PTR + 14, 1376 * 1024)
    srd(SRD_OUT, S_OUTP, 2048 * 1024)
    srd(SRD_WS, S_WSP, WS_SIZE)
    A(f"s_lshr_b32 s{S_T0}, s{S_W}, 1")
    A(f"s_cmp_eq_u32 s{S_T0}, 0")
    A(f"s_cselect_b32 s{SRD_GU}, s{S_PTR+10}, s{S_PTR+12}")
    A(f"s_cselect_b32 s{SRD_GU+1}, s{S_PTR+11}, s{S_PTR+13}")
    A(f"s_and_b32 s{SRD_GU+1}, s{SRD_GU+1}, 0xffff")
    A(f"s_mov_b32 s{SRD_GU+2}, {512*2752}")
    A(f"s_mov_b32 s{SRD_GU+3}, 0x20000")
    A(f"s_load_dword s{S_TAG}, s[{S_WSP}:{S_WSP+1}], {WS_EPOCH}")
    A(f"v_bfe_u32 v{t+2}, v{V_LANE}, 2, 1")
    A(f"v_lshlrev_b32 v{t+2}, 9, v{t+2}")
    A(f"v_lshrrev_b32 v{t+3}, 5, v{V_LANE}")
    A(f"v_lshl_add_u32 v{t+2}, v{t+3}, 7, v{t+2}")
    A(f"v_and_b32 v{t+3}, 3, v{V_LANE}")
    A(f"v_bfe_u32 v{t+4}, v{V_LANE}, 3, 2")
    A(f"v_lshl_add_u32 v{t+3}, v{t+4}, 2, v{t+3}")
    A(f"v_lshl_add_u32 v{t+2}, v{t+3}, 1, v{t+2}")
    A(f"s_lshl_b32 s{S_T0}, s{S_CG}, 10")
    for j in range(8):
        A(f"buffer_load_ushort v{112+j}, v{t+2}, {S4(SRD_PHI)}, s{S_T0} offen offset:{(j&3)*32 + (j>>2)*256}", tag="phi")
    A(f"s_mul_i32 s{S_T0}, s{S_CG}, 43")
    A(f"s_lshr_b32 s{S_T0}, s{S_T0}, 4")
    A(f"s_add_u32 s{S_T1}, s{S_CG}, 1")
    A(f"s_mul_i32 s{S_T1}, s{S_T1}, 43")
    A(f"s_lshr_b32 s{S_T1}, s{S_T1}, 4")
    A(f"s_sub_u32 s{S_NOWN}, s{S_T1}, s{S_T0}")
    A(f"s_lshl_b32 s{S_HOFF}, s{S_RB}, 2")
    A(f"s_add_u32 s{S_HOFF}, s{S_HOFF}, s{S_W}")
    A(f"s_mul_i32 s{S_HOFF}, s{S_HOFF}, 118")
    A(f"s_lshl_b32 s{S_T1}, s{S_T0}, 1")
    A(f"s_add_u32 s{S_HST}, s{S_HOFF}, s{S_T1}")
    A(f"s_lshl_b32 s{S_HST}, s{S_HST}, 10")
    A(f"s_add_u32 s{S_HST}, s{S_HST}, {WS_HB}")
    A(f"s_lshl_b32 s{S_DB}, s{S_T0}, 6")
    A(f"s_and_b32 s{S_T1}, s{S_W}, 1")
    A(f"s_mul_i32 s{S_T2}, s{S_T1}, {8*2752}")
    A(f"s_add_u32 s{S_DB}, s{S_DB}, s{S_T2}")
    A(f"s_lshl_b32 s{S_MB}, s{S_T1}, 11")
    A(f"s_lshr_b32 s{S_T1}, s{S_W}, 1")
    A(f"s_lshl_b32 s{S_T2}, s{S_T1}, 12")
    A(f"s_add_u32 s{S_MB}, s{S_MB}, s{S_T2}")
    A(f"s_add_u32 s{S_MB}, s{S_MB}, {RING}")
    A(f"v_lshrrev_b32 v{t+2}, 4, v{V_LANE}")
    A(f"v_and_b32 v{t+3}, 15, v{V_LANE}")
    A(f"v_lshlrev_b32 v{t+4}, 2, v{t+2}")
    A(f"v_xor_b32 v{t+3}, v{t+3}, v{t+4}")
    A(f"s_lshl_b32 s{S_T1}, s{S_T1}, 1")
    A(f"v_xor_b32 v{t+3}, s{S_T1}, v{t+3}")
    A(f"v_subrev_u32 v{t+4}, 4, v{t+3}")
    A(f"v_cmp_lt_u32 vcc, 11, v{t+3}")
    A(f"v_cndmask_b32 v{t+3}, v{t+3}, v{t+4}, vcc")
    A(f"v_mul_u32_u24 v{t+2}, 2752, v{t+2}")
    A(f"v_lshl_add_u32 v{V_DB}, v{t+3}, 4, v{t+2}")
    A(f"v_bfe_u32 v{t+2}, v{V_LANE}, 2, 2")
    A(f"v_bfe_u32 v{t+3}, v{V_LANE}, 4, 1")
    A(f"v_and_b32 v{t+4}, 3, v{V_LANE}")
    A(f"v_lshrrev_b32 v{t+5}, 5, v{V_LANE}")
    A(f"v_lshlrev_b32 v{t+6}, 6, v{t+2}")
    A(f"v_lshl_add_u32 v{t+6}, v{t+3}, 5, v{t+6}")
    A(f"v_lshl_add_u32 v{t+6}, v{t+4}, 3, v{t+6}")
    A(f"v_lshl_add_u32 v{V_TR64}, v{t+5}, 9, v{t+6}")
    A(f"v_add_u32 v{V_TRQ}, {L_Q}, v{V_TR64}")
    A(f"v_lshl_add_u32 v{t+6}, v{t+5}, 3, v{t+2}")
    A(f"v_lshlrev_b32 v{t+6}, 8, v{t+6}")
    A(f"v_lshl_add_u32 v{t+6}, v{t+3}, 12, v{t+6}")
    A(f"v_and_b32 v{t+7}, 1, v{t+4}")
    A(f"v_lshl_add_u32 v{t+7}, v{t+3}, 1, v{t+7}")
    A(f"v_lshl_add_u32 v{t+7}, v{t+2}, 2, v{t+7}")
    A(f"v_lshl_add_u32 v{t+6}, v{t+7}, 4, v{t+6}")
    A(f"v_lshrrev_b32 v{t+7}, 1, v{t+4}")
    A(f"v_lshl_add_u32 v{t+6}, v{t+7}, 3, v{t+6}")
    A(f"v_add_u32 v{V_TRB}, {RING}, v{t+6}")
    for ti in range(1, 6): A(f"v_xor_b32 v{V_TRB+ti}, {32*ti}, v{V_TRB}")
    A(f"v_lshrrev_b32 v{t+2}, 3, v{V_LANE}")
    A(f"v_lshlrev_b32 v{t+2}, 10, v{t+2}")
    A(f"v_and_b32 v{t+3}, 7, v{V_LANE}")
    A(f"v_bfe_u32 v{t+4}, v{V_LANE}, 4, 1")
    A(f"v_lshlrev_b32 v{t+4}, 2, v{t+4}")
    A(f"v_xor_b32 v{t+3}, v{t+3}, v{t+4}")
    A(f"v_lshl_add_u32 v{V_DW}, v{t+3}, 4, v{t+2}")
    A(f"s_lshl_b32 s{S_W2G}, s{S_W}, 14")
    A(f"s_lshl_b32 s{S_T0}, s{S_CB}, 7")
    A(f"s_add_u32 s{S_W2G}, s{S_W2G}, s{S_T0}")
    A(f"s_mul_i32 s{S_W2L}, s{S_W}, 22528")
    A(f"s_lshl_b32 s{S_W2U}, s{S_W}, 14")

def dma_A(lb, co, tag):
    for i in range(8):
        A(f"s_add_u32 s{S_SOFF}, s{S_DA}, {i*64*3072 + co}")
        A(f"s_add_u32 m0, s{S_MA}, {lb + 4096*i}")
        A(f"buffer_load_dwordx4 v{V_DA}, {S4(SRD_QKV)}, s{S_SOFF} offen lds", tag=f"{tag}{i//2}")

def dma_B(s):
    if s >= 32: return
    for i in range(2):
        A(f"s_add_u32 s{S_SOFF}, s{S_DB}, {(16*s + 4*i)*2752}")
        A(f"s_add_u32 m0, s{S_MB}, {(s % 8)*8192 + 1024*i}")
        A(f"buffer_load_dwordx4 v{V_DB}, {S4(SRD_GU)}, s{S_SOFF} offen lds", tag=f"B{s}")

NS2 = 30
def dma_W2(n, so=None):
    if n >= NS2: return
    so = S_SOFF if so is None else so
    i = n - 22 if n >= 22 else n
    sd = SRD_WO if n >= 22 else SRD_D
    stride, off = w2slot(n)
    sb = S_W2L if stride == 22528 else S_W2U
    for hf in range(2):
        A(f"s_add_u32 s{so}, s{S_W2G}, {i*65536 + hf*8192}")
        A(f"s_add_u32 m0, s{sb}, {off + hf*1024}")
        A(f"buffer_load_dwordx4 v{V_DW}, {S4(sd)}, s{so} offen lds", tag=f"w{n}")

def stats():
    t = V_T
    for i in range(8): A(f"v_mov_b32 v{t+i}, 0")
    A(f"v_mov_b32 v{t+8}, 0x3f803f80")
    for cb in range(8):
        A.wait(vm=f"x{cb}")
        for e in range(4):
            A(f"ds_read_b128 {vr(X + (4*cb+e)*4, 4)}, v{XR+e} offset:{cb*4096}", tag=f"xr{cb}")
        if cb > 0: stat_block(cb - 1)
    stat_block(7)
    A("s_nop 3")
    A(f"v_add_f32 v{t}, v{t}, v{t+1}")
    A(f"v_add_f32 v{t+2}, v{t+2}, v{t+3}")
    A(f"v_add_f32 v{t+4}, v{t+4}, v{t+5}")
    A(f"v_add_f32 v{t+6}, v{t+6}, v{t+7}")
    A(f"v_add_f32 v{t}, v{t}, v{t+2}")
    A(f"v_add_f32 v{t+4}, v{t+4}, v{t+6}")
    A(f"v_mov_b32 v{t+1}, v{t}")
    A(f"v_mov_b32 v{t+5}, v{t+4}")
    A(f"v_permlane32_swap_b32 v{t}, v{t+1}")
    A(f"v_permlane32_swap_b32 v{t+4}, v{t+5}")
    A(f"v_add_f32 v{t}, v{t}, v{t+1}")
    A(f"v_add_f32 v{t+4}, v{t+4}, v{t+5}")
    A(f"v_mul_f32 v{V_MEAN}, 0x3b000000, v{t}")
    A(f"v_mul_f32 v{t+4}, 0x3b000000, v{t+4}")
    A(f"v_fma_f32 v{t+4}, -v{V_MEAN}, v{V_MEAN}, v{t+4}")
    A(f"v_max_f32 v{t+4}, 0, v{t+4}")
    A(f"v_add_f32 v{t+4}, 0x3727c5ac, v{t+4}")
    A(f"v_rsq_f32 v{V_RSTD}, v{t+4}")
    A(f"v_mul_f32 v{V_SC}, 0x3fb8aa3b, v{V_RSTD}")
    A(f"v_mul_f32 v{V_R2}, v{V_RSTD}, v{V_RSTD}")
def stat_block(cb):
    t = V_T
    A.wait(lgkm=f"xr{cb}")
    for r in range(16):
        x = X + 16*cb + r
        A(f"v_dot2_f32_bf16 v{t+(r&3)}, v{x}, v{t+8}, v{t+(r&3)}")
        A(f"v_dot2_f32_bf16 v{t+4+(r&3)}, v{x}, v{x}, v{t+4+(r&3)}")

def center(s):
    t = V_T
    for p in range(4):
        x = X + 4*s + p
        a, b = t + 2*(p & 1), t + 2*(p & 1) + 1
        A(f"v_lshlrev_b32 v{a}, 16, v{x}")
        A(f"v_and_b32 v{b}, 0xffff0000, v{x}")
        A(f"v_sub_f32 v{a}, v{a}, v{V_MEAN}")
        A(f"v_sub_f32 v{b}, v{b}, v{V_MEAN}")
        A(f"v_cvt_pk_bf16_f32 v{x}, v{a}, v{b}")

def setup_frags():
    t = V_T + 4
    A.wait(vm="phi")
    for p in range(4): A(f"v_lshl_or_b32 v{124+p}, v{113+2*p}, 16, v{112+2*p}")
    A(f"v_bfe_u32 v{t+1}, v{V_LANE}, 2, 1")
    A(f"v_cmp_eq_u32 vcc, 0, v{t+1}")
    for p in range(4):
        A(f"v_cndmask_b32 v{t+2}, 0, v{124+p}, vcc")
        A(f"v_accvgpr_write_b32 a{A_PHI1+p}, v{t+2}")
        A(f"v_cndmask_b32 v{t+3}, v{124+p}, 0, vcc")
        A(f"v_accvgpr_write_b32 a{A_PHI2+p}, v{t+3}")
    A(f"v_and_b32 v{t+1}, 31, v{V_LANE}")
    A(f"v_bfe_u32 v{t+2}, v{V_LANE}, 2, 1")
    A(f"v_lshrrev_b32 v{t+3}, 5, v{V_LANE}")
    A(f"v_cmp_eq_u32 vcc, v{t+2}, v{t+3}")
    A(f"v_cmp_gt_u32 s[{S_EXEC}:{S_EXEC+1}], 16, v{t+1}")
    A(f"s_and_b64 vcc, vcc, s[{S_EXEC}:{S_EXEC+1}]")
    A(f"v_and_b32 v{t+2}, 3, v{t+1}")
    A(f"v_lshrrev_b32 v{t+3}, 3, v{t+1}")
    A(f"v_lshl_add_u32 v{t+2}, v{t+3}, 2, v{t+2}")
    A(f"v_and_b32 v{t+3}, 1, v{t+2}")
    A(f"v_lshlrev_b32 v{t+3}, 4, v{t+3}")
    A(f"v_mov_b32 v{t+4}, 0x3f80")
    A(f"v_lshlrev_b32 v{t+4}, v{t+3}, v{t+4}")
    A(f"v_cndmask_b32 v{t+4}, 0, v{t+4}, vcc")
    A(f"v_lshrrev_b32 v{t+2}, 1, v{t+2}")
    for p in range(4):
        A(f"v_cmp_eq_u32 vcc, {p}, v{t+2}")
        A(f"v_cndmask_b32 v{t+5}, 0, v{t+4}, vcc")
        A(f"v_accvgpr_write_b32 a{A_ID+p}, v{t+5}")

def tile64(name, vb, off, acc, side=None, per_gap=0, pre=None, unit_wait=None):
    def reads(s):
        f = A_W + (s % 3)*4
        A(f"ds_read_b64_tr_b16 {ar(f,2)}, v{vb} offset:{off+1024*s}", tag=f"{name}{s}")
        A(f"ds_read_b64_tr_b16 {ar(f+2,2)}, v{vb} offset:{off+1024*s+256}", tag=f"{name}{s}")
    reads(0); reads(1)
    for s in range(32):
        if unit_wait and s + 2 < 32 and (s + 2) % 8 == 0: unit_wait((s + 2)//8)
        if pre: pre(s)
        A.wait(lgkm=f"{name}{s}")
        a = vr(acc, 16)
        MF(a, ar(A_W + (s % 3)*4, 4), vr(X + 4*s, 4), a if s else "0")
        if s + 2 < 32: reads(s + 2)
        if side: side.pull(per_gap)

def minmax(P, t):
    A(f"v_max3_f32 v{t}, v{P}, v{P+1}, v{P+2}")
    A(f"v_min3_f32 v{t+1}, v{P}, v{P+1}, v{P+2}")
    for i in range(3, 15, 2):
        A(f"v_max3_f32 v{t}, v{t}, v{P+i}, v{P+i+1}")
        A(f"v_min3_f32 v{t+1}, v{t+1}, v{P+i}, v{P+i+1}")
    A(f"v_max_f32 v{t}, v{t}, v{P+15}")
    A(f"v_min_f32 v{t+1}, v{t+1}, v{P+15}")

def k_feature():
    t = V_T
    K, P, EP, EM = ACC, 64, 80, 96
    for p in range(8): A(f"v_cvt_pk_bf16_f32 v{t+p}, v{K+2*p}, v{K+2*p+1}")
    MF(vr(P,16), ar(A_PHI1,4), vr(t,4), "0")
    MF(vr(P,16), ar(A_PHI2,4), vr(t+4,4), vr(P,16))
    minmax(P, t+8)
    A(f"v_mul_f32 v{t+8}, v{V_SC}, v{t+8}")
    A(f"v_mul_f32 v{t+9}, v{V_SC}, v{t+9}")
    for r in range(16):
        A(f"v_fma_f32 v{EP+r}, v{P+r}, v{V_SC}, -v{t+8}")
        A(f"v_fma_f32 v{EM+r}, -v{P+r}, v{V_SC}, v{t+9}")
    for r in range(16):
        A(f"v_exp_f32 v{EP+r}, v{EP+r}")
        A(f"v_exp_f32 v{EM+r}, v{EM+r}")
    for (E, s) in ((EP, t+10), (EM, t+11)):
        A(f"v_add_f32 v{s}, v{E}, v{E+1}")
    for r in range(2, 16):
        for (E, s) in ((EP, t+10), (EM, t+11)): A(f"v_add_f32 v{s}, v{s}, v{E+r}")
    for s in (t+10, t+11): A(f"v_rcp_f32 v{s}, v{s}")
    for r in range(16):
        for (E, s) in ((EP, t+10), (EM, t+11)): A(f"v_mul_f32 v{E+r}, v{E+r}, v{s}")
    order = [0, 1, 4, 5, 2, 3, 6, 7]
    for si, E in enumerate((EP, EM)):
        for k, m in enumerate(order):
            A(f"v_cvt_pk_bf16_f32 v{P+8*si+k}, v{E+2*m}, v{E+2*m+1}")
    A(f"v_and_b32 v{t}, 31, v{V_LANE}")
    A(f"s_lshl_b32 s{S_U0}, s{S_W}, 5")
    A(f"v_add_u32 v{t}, s{S_U0}, v{t}")
    A(f"v_lshlrev_b32 v{t}, 6, v{t}")
    A(f"v_lshrrev_b32 v{t+1}, 5, v{V_LANE}")
    A(f"v_lshl_add_u32 v{t+2}, v{t+1}, 13, v{t}")
    A(f"v_lshl_add_u32 v{t+3}, v{t+1}, 4, v{t}")
    for c in range(4):
        A(f"ds_write_b128 v{t+2}, {vr(P+4*c,4)} offset:{L_PHIK+16*c}", tag="kw")

def v_epilogue():
    t = V_T
    V, EP = ACC + 16, 80
    for r in range(16): A(f"v_mul_f32 v{V+r}, v{V+r}, v{V_RSTD}")
    for p in range(8): A(f"v_cvt_pk_bf16_f32 v{EP+p}, v{V+2*p}, v{V+2*p+1}")
    for p in range(4): A(f"v_mov_b32 v{EP+8+p}, 0x3f803f80")
    A(f"ds_write_b128 v{t+3}, {vr(EP,4)} offset:{L_VEXT}", tag="kw")
    A(f"ds_write_b128 v{t+3}, {vr(EP+4,4)} offset:{L_VEXT+8192}", tag="kw")
    A(f"ds_write_b128 v{t+3}, {vr(EP+8,4)} offset:{L_VEXT+32}", tag="kw")
    A(f"ds_write_b128 v{t+3}, {vr(EP+8,4)} offset:{L_VEXT+8192+32}", tag="kw")

def kv_part():
    t = V_T
    A(f"s_and_b32 s{S_U0}, s{S_W}, 1")
    A(f"s_lshl_b32 s{S_U0}, s{S_U0}, 13")
    A(f"v_add_u32 v{t}, s{S_U0}, v{V_TR64}")
    def rd(s):
        fa = A_G + 8*(s % 3)
        A(f"ds_read_b64_tr_b16 {ar(fa,2)}, v{t} offset:{L_PHIK+1024*s}", tag=f"kv{s}")
        A(f"ds_read_b64_tr_b16 {ar(fa+2,2)}, v{t} offset:{L_PHIK+1024*s+256}", tag=f"kv{s}")
        A(f"ds_read_b64_tr_b16 {ar(fa+4,2)}, v{t} offset:{L_VEXT+1024*s}", tag=f"kv{s}")
        A(f"ds_read_b64_tr_b16 {ar(fa+6,2)}, v{t} offset:{L_VEXT+1024*s+256}", tag=f"kv{s}")
    rd(0); rd(1)
    for s in range(8):
        A.wait(lgkm=f"kv{s}")
        fa = A_G + 8*(s % 3)
        MF(ar(A_D,16), ar(fa,4), ar(fa+4,4), ar(A_D,16) if s else "0")
        if s + 2 < 8: rd(s + 2)
    def sel(base):
        for r in range(8): A(f"v_accvgpr_read_b32 v{t+1+r}, a{A_D+base+r}")
    return sel

def kv_store():
    t = V_T
    def grp():
        A("s_nop 11")
        A(f"s_cmp_lt_u32 s{S_W}, 2")
        A("s_cbranch_scc1 L_kvs0")
        for r in range(8): A(f"v_accvgpr_read_b32 v{t+2+r}, a{A_D+8+r}")
        A("s_branch L_kvs1")
        A.label("L_kvs0")
        for r in range(8): A(f"v_accvgpr_read_b32 v{t+2+r}, a{A_D+r}")
        A.label("L_kvs1")
        A("s_nop 1")
    return grp

def kv_store2():
    t = V_T
    for p in range(4): A(f"v_cvt_pk_bf16_f32 v{t+2+p}, v{t+2+2*p}, v{t+3+2*p}")
    A(f"s_and_b32 s{S_U0}, s{S_W}, 1")
    A(f"s_lshl_b32 s{S_U1}, s{S_CG}, 1")
    A(f"s_add_u32 s{S_U0}, s{S_U0}, s{S_U1}")
    A(f"s_lshl_b32 s{S_U0}, s{S_U0}, 15")
    A(f"s_lshr_b32 s{S_U1}, s{S_W}, 1")
    A(f"s_lshl_b32 s{S_U1}, s{S_U1}, 14")
    A(f"s_add_u32 s{S_U0}, s{S_U0}, s{S_U1}")
    A(f"s_lshl_b32 s{S_U1}, s{S_RB}, 10")
    A(f"s_add_u32 s{S_U0}, s{S_U0}, s{S_U1}")
    A(f"s_add_u32 s{S_U0}, s{S_U0}, {WS_KVP}")
    A(f"buffer_store_dwordx4 {vr(t+2,4)}, v{V_L16}, {S4(SRD_WS)}, s{S_U0} offen sc1", tag="kvst")

def flag_store(base, s_line, s_idx, lbl):
    t = V_T
    A(f"s_cmp_lg_u32 s{S_W}, 0")
    A(f"s_cbranch_scc1 {lbl}")
    A(f"s_lshl_b32 s{S_U0}, s{s_line}, 7")
    A(f"s_lshl_b32 s{S_U1}, s{s_idx}, 2")
    A(f"s_add_u32 s{S_U0}, s{S_U0}, s{S_U1}")
    A(f"s_add_u32 s{S_U0}, s{S_U0}, {base}")
    A(f"v_mov_b32 v30, s{S_TAG}")
    A(f"s_mov_b64 exec, 1")
    A(f"buffer_store_dword v30, off, {S4(SRD_WS)}, s{S_U0} sc1", cond=True)
    A(f"s_mov_b64 exec, -1")
    A.label(lbl)

def poll(base, s_line, lbl):
    t = V_T
    A(f"s_cmp_lg_u32 s{S_W}, 0")
    A(f"s_cbranch_scc1 {lbl}_done")
    A(f"s_lshl_b32 s{S_U0}, s{s_line}, 7")
    A(f"s_add_u32 s{S_U0}, s{S_U0}, {base}")
    A(f"v_and_b32 v{t+10}, 15, v{V_LANE}")
    A(f"v_lshlrev_b32 v{t+10}, 2, v{t+10}")
    A(f"s_mov_b32 s{S_CNT}, 0")
    A.label(f"{lbl}_loop")
    A(f"buffer_load_dword v{t+11}, v{t+10}, {S4(SRD_WS)}, s{S_U0} offen sc1", cond=True)
    A.wait(vm=0)
    A(f"v_cmp_ne_u32 vcc, s{S_TAG}, v{t+11}")
    A(f"s_add_u32 s{S_CNT}, s{S_CNT}, 1")
    A("s_nop 4")
    A(f"s_cmp_eq_u64 vcc, 0")
    A(f"s_cbranch_scc1 {lbl}_done")
    A(f"s_cmp_lt_u32 s{S_CNT}, 200000")
    A(f"s_cbranch_scc1 {lbl}_loop")
    A.label(f"{lbl}_done")
    A("s_barrier")

def q_feature():
    t = V_T
    P = QACC
    for p in range(8): A(f"v_cvt_pk_bf16_f32 v{t+p}, v{P+2*p}, v{P+2*p+1}")
    MF(vr(P,16), ar(A_PHI1,4), vr(t,4), "0")
    MF(vr(P,16), ar(A_PHI2,4), vr(t+4,4), vr(P,16))
    minmax(P, t+8)
    A(f"v_mul_f32 v{t+8}, v{V_SC}, v{t+8}")
    A(f"v_mul_f32 v{t+9}, v{V_SC}, v{t+9}")
    for m in range(8):
        a, b, c, d = t+10, t+11, t+12, P+2*m
        A(f"v_fma_f32 v{a}, v{P+2*m}, v{V_SC}, -v{t+8}")
        A(f"v_fma_f32 v{b}, v{P+2*m+1}, v{V_SC}, -v{t+8}")
        A(f"v_fma_f32 v{P+2*m}, -v{P+2*m}, v{V_SC}, v{t+9}")
        A(f"v_fma_f32 v{P+2*m+1}, -v{P+2*m+1}, v{V_SC}, v{t+9}")
        A(f"v_exp_f32 v{a}, v{a}")
        A(f"v_exp_f32 v{b}, v{b}")
        A(f"v_exp_f32 v{P+2*m}, v{P+2*m}")
        A(f"v_exp_f32 v{P+2*m+1}, v{P+2*m+1}")
        A(f"v_cvt_pk_bf16_f32 v{t+m}, v{a}, v{b}")
        A(f"v_cvt_pk_bf16_f32 v{P+2*m}, v{P+2*m}, v{P+2*m+1}")
    for m in (7, 6, 5, 4): A(f"v_mov_b32 v{P+8+m}, v{P+2*m}")
    for m in (3, 2, 1, 0): A(f"v_mov_b32 v{P+8+m}, v{P+2*m}")
    for m in range(8): A(f"v_mov_b32 v{P+m}, v{t+m}")
    for si in range(2):
        for i in range(4):
            A(f"v_permlane32_swap_b32 v{P+8*si+i}, v{P+8*si+i+4}")

def passB(side):
    NT = 6
    def acc(ti): return ar(A_T5, 16) if ti == 5 else vr(ACC + 16*ti, 16)
    def reads(s, ti):
        f = A_W + (s & 1)*24 + ti*4
        o = (s % 8)*8192
        A(f"ds_read_b64_tr_b16 {ar(f,2)}, v{V_TRB+ti} offset:{o}", tag=f"rb{s}_{ti}")
        A(f"ds_read_b64_tr_b16 {ar(f+2,2)}, v{V_TRB+ti} offset:{o+1024}", tag=f"rb{s}_{ti}")
    def sync(s):
        A.wait(vm=f"B{min(s+2,31)}")
        A("s_barrier")
        dma_B(s + 6); dma_B(s + 7)
    sync(0)
    for ti in range(NT): reads(0, ti)
    for s in range(32):
        if s % 2 == 0 and s > 0: sync(s)
        if TS and s % 4 == 0 and s > 0: ts(f"B{s}")
        for ti in range(NT):
            if ti % 2 == 0: A.wait(lgkm=f"rb{s}_{ti+1}")
            a = acc(ti)
            MF(a, ar(A_W + (s & 1)*24 + ti*4, 4), vr(X + 4*s, 4), a if s else "0")
            if s + 1 < 32: reads(s + 1, ti)
            side(s, ti)

def glu():
    t = V_T
    for ti in range(6):
        a = ACC + 16*ti
        if ti == 5:
            a = ACC
            for r in range(16): A(f"v_accvgpr_read_b32 v{a+r}, a{A_T5+r}")
        for r in range(8):
            A(f"v_max_f32 v{a+r}, 0, v{a+r}")
            A(f"v_mul_f32 v{a+8+r}, v{a+8+r}, v{V_R2}")
        for r in range(8): A(f"v_mul_f32 v{a+r}, v{a+r}, v{a+8+r}")
        for p in range(4): A(f"v_cvt_pk_bf16_f32 v{a+8+p}, v{a+2*p}, v{a+2*p+1}")
        if ti == 4:
            A(f"s_cmp_lt_u32 s{S_NOWN}, 3")
            A("s_cbranch_scc1 L_skip5")
        A(f"s_add_u32 s{S_T0}, s{S_HST}, {1024*ti}")
        A(f"buffer_store_dwordx4 {vr(a+8,4)}, v{V_L16}, {S4(SRD_WS)}, s{S_T0} offen sc1", cond=(ti >= 4), tag="hst")
    A.label("L_skip5")

def oside():
    t = V_T
    poll(WS_FKV, S_CG, "L_pkv")
    ts("kv_polled")
    A(f"s_and_b32 s{S_T0}, s{S_W}, 1")
    A(f"s_lshl_b32 s{S_T1}, s{S_CG}, 1")
    A(f"s_add_u32 s{S_T0}, s{S_T0}, s{S_T1}")
    A(f"s_lshl_b32 s{S_T0}, s{S_T0}, 15")
    A(f"s_lshr_b32 s{S_T1}, s{S_W}, 1")
    A(f"s_lshl_b32 s{S_T1}, s{S_T1}, 14")
    A(f"s_add_u32 s{S_T0}, s{S_T0}, s{S_T1}")
    A(f"s_add_u32 s{S_T0}, s{S_T0}, {WS_KVP}")
    for p in range(16):
        A(f"s_add_u32 s{S_T1}, s{S_T0}, {1024*p}")
        A(f"buffer_load_dwordx4 {ar(A_G+4*p,4)}, v{V_L16}, {S4(SRD_WS)}, s{S_T1} offen sc1", tag=f"kp{p}")
    for n in range(11, 19): dma_W2(n)
    D = 32
    for p in range(16):
        A.wait(vm=f"kp{p}")
        MF(vr(D,16), ar(A_ID,4), ar(A_G+4*p,4), vr(D,16) if p else "0")
    for p in range(4): A(f"v_cvt_pk_bf16_f32 v{t+p}, v{D+2*p}, v{D+2*p+1}")
    A(f"s_and_b32 s{S_T0}, s{S_W}, 1")
    A(f"s_lshl_b32 s{S_T0}, s{S_T0}, 1")
    A(f"s_lshr_b32 s{S_T1}, s{S_W}, 1")
    A(f"s_add_u32 s{S_T0}, s{S_T0}, s{S_T1}")
    A(f"s_lshl_b32 s{S_T0}, s{S_T0}, 10")
    A(f"s_add_u32 s{S_T0}, s{S_T0}, {L_KVF}")
    A(f"v_add_u32 v{t+4}, s{S_T0}, v{V_L16}")
    A(f"ds_write_b128 v{t+4}, {vr(t,4)}")
    for p in range(4): A(f"v_mov_b32 v{t+8+p}, 0x3f803f80")
    A(f"v_mov_b32 v{t+5}, {L_ONES}")
    A(f"ds_write_b128 v{t+5}, {vr(t+8,4)}")
    A.wait(lgkm=0)
    A("s_barrier")
    A(f"v_and_b32 v{t}, 27, v{V_LANE}")
    A(f"v_cmp_eq_u32 vcc, 17, v{t}")
    G = 48
    for f in range(4):
        A(f"v_add_u32 v{t+1}, {L_KVF + 1024*f}, v{V_L16}")
        A(f"v_mov_b32 v{t+2}, {L_ONES}")
        A(f"v_cndmask_b32 v{t+1}, v{t+1}, v{t+2}, vcc")
        A(f"ds_read_b128 {vr(G+4*f,4)}, v{t+1}", tag="kf")
    A.wait(lgkm="kf")
    for hh in range(2):
        Dp, Dm = (64, 80)
        MF(vr(Dp,16), vr(G+8*hh,4), vr(QACC+4*hh,4), "0")
        MF(vr(Dm,16), vr(G+8*hh+4,4), vr(QACC+8+4*hh,4), "0")
        sp, sm = Dp+9, Dm+9
        A(f"v_mul_f32 v{t}, v{Dp+8}, v{sm}")
        A(f"v_fma_f32 v{t}, v{Dm+8}, v{sp}, v{t}")
        A(f"v_mul_f32 v{t+1}, v{sp}, v{sm}")
        A(f"v_mov_b32 v{t+2}, 0x358637bd")
        A(f"v_fma_f32 v{t}, v{t+1}, v{t+2}, v{t}")
        A(f"v_rcp_f32 v{t}, v{t}")
        for r in range(8):
            A(f"v_mul_f32 v{Dp+r}, v{Dp+r}, v{sm}")
            A(f"v_fma_f32 v{Dp+r}, v{Dm+r}, v{sp}, v{Dp+r}")
        for r in range(8): A(f"v_mul_f32 v{Dp+r}, v{Dp+r}, v{t}")
        for p in range(4): A(f"v_cvt_pk_bf16_f32 v{t+4+4*hh+p}, v{Dp+2*p}, v{Dp+2*p+1}")
        A(f"s_lshl_b32 s{S_T0}, s{S_CG}, 1")
        A(f"s_add_u32 s{S_T0}, s{S_T0}, s{S_HOFF}")
        A(f"s_add_u32 s{S_T0}, s{S_T0}, {86+hh}")
        A(f"s_lshl_b32 s{S_T0}, s{S_T0}, 10")
        A(f"s_add_u32 s{S_T0}, s{S_T0}, {WS_HB}")
        A(f"buffer_store_dwordx4 {vr(t+4+4*hh,4)}, v{V_L16}, {S4(SRD_WS)}, s{S_T0} offen sc1", tag="ost")
    A.wait(vm="ost")
    A("s_barrier")
    flag_store(WS_FHO, S_RB, S_CG, "L_fho")

def phase2():
    t = V_T
    V_TR0, V_TR1, V_TU0, V_TU1, V_XO = 3, 4, 5, 6, 7
    ACC2 = 32
    WF = 96
    HF = 128; DEPTH = 12
    XRES = 224
    A(f"v_lshrrev_b32 v{t}, 2, v0")
    A(f"s_lshl_b32 s{S_T0}, s{S_RB64}, 6")
    A(f"v_add_u32 v{t}, s{S_T0}, v{t}")
    A(f"v_lshlrev_b32 v{t}, 10, v{t}")
    A(f"v_and_b32 v{t+1}, 3, v0")
    A(f"v_lshl_add_u32 v{t}, v{t+1}, 5, v{t}")
    A(f"s_lshl_b32 s{S_T0}, s{S_CB}, 7")
    A(f"v_add_u32 v{V_XO}, s{S_T0}, v{t}")
    A(f"buffer_load_dwordx4 {vr(XRES,4)}, v{V_XO}, {S4(SRD_X)}, 0 offen", tag="xr")
    A(f"buffer_load_dwordx4 {vr(XRES+4,4)}, v{V_XO}, {S4(SRD_X)}, 0 offen offset:16", tag="xr")
    A(f"v_bfe_u32 v{t+1}, v{V_LANE}, 2, 2")
    A(f"v_lshrrev_b32 v{t+2}, 5, v{V_LANE}")
    A(f"v_lshl_add_u32 v{t+1}, v{t+2}, 3, v{t+1}")
    A(f"v_lshlrev_b32 v{t+1}, 7, v{t+1}")
    A(f"v_bfe_u32 v{t+2}, v{V_LANE}, 4, 1")
    A(f"v_lshl_add_u32 v{t+1}, v{t+2}, 5, v{t+1}")
    A(f"v_and_b32 v{t+2}, 3, v{V_LANE}")
    A(f"v_lshl_add_u32 v{t+1}, v{t+2}, 3, v{t+1}")
    A(f"v_bfe_u32 v{t+2}, v{V_LANE}, 3, 1")
    A(f"v_lshl_add_u32 v{t+1}, v{t+2}, 6, v{t+1}")
    A(f"v_add_u32 v{V_TR0}, s{S_W2L}, v{t+1}")
    A(f"v_xor_b32 v{V_TR1}, 64, v{V_TR0}")
    A(f"v_add_u32 v{V_TU0}, s{S_W2U}, v{t+1}")
    A(f"v_add_u32 v{V_TU0}, {RING}, v{V_TU0}")
    A(f"v_xor_b32 v{V_TU1}, 64, v{V_TU0}")
    A(f"s_lshl_b32 s{S_HA}, s{S_RB64}, 1")
    A(f"s_mul_i32 s{S_HA}, s{S_HA}, 118")
    A(f"s_add_u32 s{S_HA}, s{S_HA}, s{S_W}")
    A(f"s_lshl_b32 s{S_HA}, s{S_HA}, 10")
    A(f"s_add_u32 s{S_HA}, s{S_HA}, {WS_HB}")
    A(f"s_add_u32 s{S_HA+1}, s{S_HA}, {118*1024}")
    A(f"s_lshr_b32 s{S_T3}, s{S_RB64}, 1")
    ts("p2_pre")
    poll(WS_FHO, S_T3, "L_pho")
    ts("p2_polled")
    def hload(n):
        if n >= NS2: return
        kap = 4*n if n < 22 else 86 + 4*(n-22)
        for tg in range(2):
            A(f"s_add_u32 s{S_SOFF}, s{S_HA+tg}, {kap*1024}")
            A(f"buffer_load_dwordx4 {vr(HF + (n % DEPTH)*8 + tg*4, 4)}, v{V_L16}, {S4(SRD_WS)}, s{S_SOFF} offen sc1", tag=f"h{n}")
    for n in range(DEPTH): hload(n)
    def reads(n):
        b = WF + (n & 1)*8
        stride, off = w2slot(n)
        if stride == 22528: r0, r1, o = V_TR0, V_TR1, off
        else: r0, r1, o = V_TU0, V_TU1, off - RING
        for ct, vb in enumerate((r0, r1)):
            A(f"ds_read_b64_tr_b16 {vr(b+4*ct,2)}, v{vb} offset:{o}", tag=f"r2_{n}")
            A(f"ds_read_b64_tr_b16 {vr(b+4*ct+2,2)}, v{vb} offset:{o+512}", tag=f"r2_{n}")
    A.wait(vm="w0")
    reads(0)
    for n in range(NS2):
        if n + 1 < NS2:
            A.wait(vm=f"w{n+1}")
            reads(n + 1)
        A.wait(vm=f"h{n}", lgkm=f"r2_{n}")
        for ct in range(2):
            for tg in range(2):
                acc = vr(ACC2 + (ct*2+tg)*16, 16)
                MF(acc, vr(WF + (n&1)*8 + 4*ct, 4), vr(HF + (n % DEPTH)*8 + tg*4, 4), acc if n else "0")
        hload(n + DEPTH)
        dma_W2(n + 19)
    ts("p2_loop")
    A("s_barrier")
    A(f"v_and_b32 v{t}, 31, v{V_LANE}")
    A(f"v_mul_u32_u24 v{t}, 272, v{t}")
    A(f"v_lshrrev_b32 v{t+1}, 5, v{V_LANE}")
    A(f"v_lshl_add_u32 v{t}, v{t+1}, 4, v{t}")
    A(f"s_mul_i32 s{S_T0}, s{S_W}, {64*272}")
    A(f"v_add_u32 v{t}, s{S_T0}, v{t}")
    for ct in range(2):
        for tg in range(2):
            for q in range(4):
                a = ACC2 + (ct*2+tg)*16 + 4*q
                A(f"ds_write_b128 v{t}, {vr(a,4)} offset:{L_RED + tg*32*272 + ct*128 + q*32}")
    A.wait(lgkm=0)
    A("s_barrier")
    A(f"v_lshrrev_b32 v{t}, 2, v0")
    A(f"v_mul_u32_u24 v{t}, 272, v{t}")
    A(f"v_and_b32 v{t+1}, 3, v0")
    A(f"v_lshl_add_u32 v{t}, v{t+1}, 6, v{t}")
    R = 96
    for w in range(4):
        for q in range(4):
            A(f"ds_read_b128 {vr(R+16*w+4*q,4)}, v{t} offset:{L_RED + w*64*272 + 16*q}", tag=f"rr{w}")
    A.wait(vm="xr", lgkm="rr1")
    for r in range(16): A(f"v_add_f32 v{R+r}, v{R+r}, v{R+16+r}")
    A.wait(lgkm="rr3")
    for r in range(16): A(f"v_add_f32 v{R+32+r}, v{R+32+r}, v{R+48+r}")
    for r in range(16): A(f"v_add_f32 v{R+r}, v{R+r}, v{R+32+r}")
    for p in range(8):
        A(f"v_lshlrev_b32 v{t+2}, 16, v{XRES+p}")
        A(f"v_and_b32 v{t+3}, 0xffff0000, v{XRES+p}")
        A(f"v_add_f32 v{R+2*p}, v{R+2*p}, v{t+2}")
        A(f"v_add_f32 v{R+2*p+1}, v{R+2*p+1}, v{t+3}")
        A(f"v_cvt_pk_bf16_f32 v{R+16+p}, v{R+2*p}, v{R+2*p+1}")
    A(f"buffer_store_dwordx4 {vr(R+16,4)}, v{V_XO}, {S4(SRD_OUT)}, 0 offen")
    A(f"buffer_store_dwordx4 {vr(R+20,4)}, v{V_XO}, {S4(SRD_OUT)}, 0 offen offset:16")
    ts("end"); ts("end_real", True); ts_store()
    A(f"s_cmp_lg_u32 s2, 0")
    A("s_cbranch_scc1 L_end")
    A(f"s_cmp_lg_u32 s{S_W}, 0")
    A("s_cbranch_scc1 L_end")
    A(f"v_mov_b32 v{t}, s{S_TAG}")
    A(f"v_mov_b32 v{t+1}, 0")
    A("s_mov_b64 exec, 1")
    A(f"buffer_store_dword v{t}, v{t+1}, {S4(SRD_WS)}, 0 offen sc1", cond=True)

def build():
    startup()
    ts("issued")
    stats()
    A.wait(lgkm=0)
    A(f"s_add_u32 s{S_TAG}, s{S_TAG}, 1")
    ts("stats")
    A("s_barrier")
    dma_A(L_V, 2048, "V")
    dma_A(L_Q, 0, "Q")
    for s in range(6): dma_B(s)
    ts("VQB_issued")
    setup_frags()
    center(0)
    A.wait(vm="K0"); A("s_barrier")
    def kunit(u):
        A.wait(vm=f"K{u}"); A("s_barrier")
    cen = Q()
    for s in range(1, 32): cen.add(lambda s=s: center(s))
    tile64("rk", V_TR64, L_K, ACC, side=cen, per_gap=20, unit_wait=kunit)
    ts("Ktile")
    A.wait(vm="V3"); A("s_barrier")
    ks = Q(); ks.add(k_feature)
    tile64("rv", V_TR64, L_V, ACC + 16, side=ks, per_gap=4)
    ts("Vtile")
    A.wait(vm="Q3"); A("s_barrier")
    ks.add(v_epilogue)
    tile64("rq", V_TRQ, 0, QACC, side=ks, per_gap=4)
    ks.flush()
    A.wait(lgkm=0)
    A("s_barrier")
    ts("Qtile")
    sq = Q()
    sq.add(lambda: kv_part())
    sq.add(kv_store(), atomic=True)
    sq.add(kv_store2)
    marks = {}
    def after_kv():
        A.wait(vm="kvst")
    q2 = Q(); q2.add(q_feature)
    for n in range(11): q2.add(lambda n=n: dma_W2(n, S_SOFF2), atomic=True)
    state = {"flag": False}
    def side(s, ti):
        if sq.groups: sq.pull(4)
        elif s >= 6 and not state["flag"] and s % 2 == 1 and ti == 5:
            A.wait(vm="kvst")
            state["flag"] = "armed"
        elif state["flag"] == "armed" and ti == 0:
            flag_store(WS_FKV, S_CG, S_RB, "L_fkv"); state["flag"] = True
        else: q2.pull(3)
    passB(side)
    sq.flush(); q2.flush()
    ts("passB")
    glu()
    ts("glu")
    oside()
    ts("oside")
    phase2()
    A.label("L_end")
    A("s_endpgm")

build()
code = resolve_waits(A.code)
code, npad = pad_hazards(code)
hdr = open("cdna_kernels/" + KNAME[:-7] + ".s.ref").read().split("; Override launch")[0]
txt = hdr + ("; TSNAMES " + ",".join(TS_NAMES) + "\n" if TS else "") + "; @launch grid=(256,1,1) block=(256,1,1) lds=163840\n"
txt += f""".amdgcn_target "amdgcn-amd-amdhsa--gfx950"
.text
.globl {KNAME}
.p2align 8
.type {KNAME},@function
{KNAME}:
""" + render(code) + f""".section .rodata,"a"
.p2align 6
.amdhsa_kernel {KNAME}
  .amdhsa_next_free_vgpr 512
  .amdhsa_next_free_sgpr 102
  .amdhsa_accum_offset 256
  .amdhsa_group_segment_fixed_size 0
  .amdhsa_kernarg_size 88
  .amdhsa_user_sgpr_count 2
  .amdhsa_user_sgpr_kernarg_segment_ptr 1
  .amdhsa_system_sgpr_workgroup_id_x 1
.end_amdhsa_kernel
"""
open(ARGS[0], "w").write(txt)
print("instructions", sum(1 for i in code if i.kind not in ('label','comment')), "nop states", npad)
```
